```python
import torch

def _softmax(x, axis=-1):
    return torch.softmax(x, dim=axis)
def _gelu(x):
    return torch.nn.functional.gelu(x, approximate="tanh")
def _silu(x):
    return torch.nn.functional.silu(x)
def _sigmoid(x):
    return torch.sigmoid(x)
def _layernorm(x, axis=-1, eps=1e-5):
    m = x.mean(dim=axis, keepdim=True)
    v = x.var(dim=axis, keepdim=True, unbiased=False)
    return (x - m) / torch.sqrt(v + eps)
def _scatter_add(tgt, idx, src, axis=0):
    return tgt.clone().index_add_(axis, idx, src)
def _segment_sum(src, seg, n):
    out = torch.zeros((n,) + src.shape[1:], dtype=src.dtype)
    return out.index_add_(0, seg, src)
def _pad(x, pw):
    flat = tuple(v for pair in reversed(pw) for v in pair)
    return torch.nn.functional.pad(x, flat)

kernel_name = 'standalone__gqa_block_cached__sampling'

def setup_inputs():

    _w = (lambda a: (lambda t: t.to(torch.bfloat16) if t.is_floating_point() else t)(torch.as_tensor(a)))
    B, Sq, D = 32, 32, 576
    Hq, Hkv, Sk, Dh = 32, 16, 2048, 128
    assert Hq % Hkv == 0, (Hq, Hkv)
    return {
        "x": _w((lambda *s: torch.randn(*s, dtype=torch.bfloat16) * 0.8)(B, Sq, D)),
        "k_cache": _w((lambda *s: torch.randn(*s, dtype=torch.bfloat16) * 0.8)(B, Hkv, Sk, Dh)),
        "v_cache": _w((lambda *s: torch.randn(*s, dtype=torch.bfloat16) * 0.05)(B, Hkv, Sk, Dh)),
        "wq": _w((lambda *s: torch.randn(*s, dtype=torch.bfloat16) * 0.8)(D, Hq * Dh) * (D ** -0.5)),
        "wo": _w((lambda *s: torch.randn(*s, dtype=torch.bfloat16) * 0.05)(Hq * Dh, D) * ((Hq * Dh) ** -0.5)),
    }

def reference(x, k_cache, v_cache, wq, wo):
    B, Sq, D = x.shape
    Hq, Dh = 32, 128
    Hkv = k_cache.shape[1]
    rep = Hq // Hkv
    q = (lambda x, *d: x.permute(*d))((x @ wq).reshape(B, Sq, Hq, Dh), 0, 2, 1, 3)
    k = (lambda x, n, axis: torch.repeat_interleave(x, n, dim=axis))(k_cache, rep, axis=1)
    v = (lambda x, n, axis: torch.repeat_interleave(x, n, dim=axis))(v_cache, rep, axis=1)
    scores = torch.einsum("bhqd,bhkd->bhqk", q, k) * (Dh ** -0.5)
    p = _softmax(scores, axis=-1)
    o = torch.einsum("bhqk,bhkd->bhqd", p, v)
    return (lambda x, *d: x.permute(*d))(o, 0, 2, 1, 3).reshape(B, Sq, Hq * Dh) @ wo
```

```python
import sys, math, struct

class Opt:
    debug_dump = None
    kv_flags = "nt"
    part_flags = ""
    red_flags = ""
opt = Opt()

L = []
def A(s): L.append("    " + s)
def LBL(s): L.append(s + ":")
def C(s): L.append("    ; " + s)

def f2u(x): return struct.unpack('<I', struct.pack('<f', x))[0]
SCALE = math.log2(math.e) / math.sqrt(128.0)

sK, sV, sWQ, sWO, sX, sWS = 4, 8, 12, 16, 20, 24
def srd(b): return f"s[{b}:{b+3}]"
sW=28; sT=29; sSlot=30; sRB=31; sRE=32; sKoff=33; sVoff=34; sT0=35; sT1=36; sC=37; sSS=38
sWqOff=39; sXoff=40; sWoOff=41; sMConsW=42; sMConsV=43; sMIssWq=44; sMIssVo=45; sMSide=46; sP=47
sFree=48; sBw=49; sBp=50; sSSp=51; sT2=52; sT3=53; sWxOff=54; sMBar=55; sTail=56; sCnt=57
vL16=1; vKd=[2,3,4,5]; vVd=6; vWqd=7; vWod=8; vWxd=9; vXd=10; vKr=11; vVr=12; vWr=13; vWrX=14
vM0=15; vM1=16; vL8=17
vL0=18
vL1=20
vA0=22
vA1=24
vMs0=26; vMs1=27; vX0=28; vX1=29; vD0=30; vD1=31
vT=32
vXF=48
vRCV=32
vS=[96,112]
vO=128
def Oreg(t,qt): return vO+32*t+16*qt
aQ=0; aKF=64; aVF=96; aPm=128; aPx=192
def vr(b,n): return f"v[{b}:{b+n-1}]"
def ar(b,n): return f"a[{b}:{b+n-1}]"
AUX=131072
MFMA="v_mfma_f32_32x32x16_bf16"

uid=[0]
def newlbl(p):
    uid[0]+=1; return f"L_{p}_{uid[0]}"

def issue_kv(kind, slot, soff):
    s = sK if kind=='K' else sV
    A(f"s_mov_b32 m0, s{slot}")
    A(f"s_add_u32 s{sT0}, s{soff}, 4096")
    for n in range(4):
        v = vKd[n] if kind=='K' else vVd
        A(f"buffer_load_dwordx4 v{v}, {srd(s)}, s{soff} offen offset:{n*1024} {opt.kv_flags} lds")
    A(f"s_add_u32 m0, s{slot}, 4096")
    A(f"s_add_u32 s{soff}, s{soff}, 32768")
    for n in range(4):
        v = vKd[n] if kind=='K' else vVd
        A(f"buffer_load_dwordx4 v{v}, {srd(s)}, s{sT0} offen offset:{n*1024} {opt.kv_flags} lds")

def issue_unit(s, vd, slot, soff, step, adv):
    for n in range(8):
        if n%4==0:
            if n==0: A(f"s_mov_b32 m0, s{slot}")
            else: A(f"s_add_u32 m0, s{slot}, 4096")
        A(f"s_add_u32 s{sT0}, s{soff}, {n*step-(n&3)*1024}")
        A(f"buffer_load_dwordx4 v{vd}, {srd(s)}, s{sT0} offen offset:{(n&3)*1024} lds")
    if adv: A(f"s_add_u32 s{soff}, s{soff}, {adv}")

def issue_wq(slot, xf):
    issue_unit(sWQ, vWqd, slot, sWqOff, 8*8192, 64*8192)
    for u in range(4):
        A(f"buffer_load_dwordx4 {vr(xf+4*u,4)}, v{vXd}, {srd(sX)}, s{sXoff} offen offset:{32*u}")
    A(f"s_add_u32 s{sXoff}, s{sXoff}, 128")

def issue_wo(slot):
    issue_unit(sWO, vWod, slot, sWoOff, 4*1152, 32*1152)
def issue_wx(slot):
    issue_unit(sWO, vWxd, slot, sWxOff, 8*1152, 256*1152)

def adv_slot():
    A(f"s_add_u32 s{sSlot}, s{sSlot}, 8192")
    A(f"s_cmp_ge_u32 s{sSlot}, s{sRE}")
    A(f"s_cselect_b32 s{sSlot}, s{sRB}, s{sSlot}")

def reads_W(slot, vbase):
    A(f"v_add_u32 v{vT}, s{slot}, v{vbase}")
    A(f"v_xor_b32 v{vT+1}, 64, v{vT}")
    for u in range(4):
        for tau in range(2):
            for w2 in range(2):
                fi=u*2+tau
                A(f"ds_read_b64_tr_b16 {ar(aKF+4*fi+2*w2,2)}, v{vT+tau} offset:{u*2048+w2*512}")
def mfma_W(xf, first=False):
    for u in range(4):
        for tau in range(2):
            fi=u*2+tau
            c = "0" if (first and u==0) else ar(aPx+16*tau,16)
            A(f"{MFMA} {ar(aPx+16*tau,16)}, {ar(aKF+4*fi,4)}, {vr(xf+4*u,4)}, {c}")
def reads_V(slot, dst):
    A(f"v_add_u32 v{vT}, s{slot}, v{vVr}")
    for t in range(1,4): A(f"v_xor_b32 v{vT+t}, {64*t}, v{vT}")
    for u in range(2):
        for t in range(4):
            for w2 in range(2):
                A(f"ds_read_b64_tr_b16 {ar(dst+8*t+4*u+2*w2,2)}, v{vT+t} offset:{u*4096+w2*1024}")
def reads_OF(preg):
    A(f"s_and_b32 s{sT0}, s{preg}, 3")
    A(f"s_xor_b32 s{sT0}, s{sT0}, 1")
    A(f"s_lshl_b32 s{sT0}, s{sT0}, 13")
    A(f"s_lshr_b32 s{sT1}, s{preg}, 2")
    A(f"s_lshl_b32 s{sT1}, s{sT1}, 11")
    A(f"s_add_u32 s{sT0}, s{sT0}, s{sT1}")
    A(f"s_add_u32 s{sT0}, s{sT0}, {AUX}")
    A(f"v_add_u32 v{vT+4}, s{sT0}, v{vL16}")
    A(f"ds_read_b128 {vr(vXF,4)}, v{vT+4}")
    A(f"ds_read_b128 {vr(vXF+4,4)}, v{vT+4} offset:1024")
def mfma_O():
    for u in range(2):
        for t in range(4):
            A(f"{MFMA} {ar(aPm+16*t,16)}, {ar(aKF+8*t+4*u,4)}, {vr(vXF+4*u,4)}, {ar(aPm+16*t,16)}")
def reads_XFx():
    A(f"s_lshl_b32 s{sT0}, s{sW}, 1")
    A(f"s_and_b32 s{sT0}, s{sT0}, 3")
    A(f"s_lshl_b32 s{sT0}, s{sT0}, 13")
    A(f"s_lshr_b32 s{sT1}, s{sW}, 1")
    A(f"s_lshl_b32 s{sT1}, s{sT1}, 11")
    A(f"s_add_u32 s{sT0}, s{sT0}, s{sT1}")
    A(f"s_add_u32 s{sT0}, s{sT0}, {AUX}")
    A(f"v_add_u32 v{vT+4}, s{sT0}, v{vL16}")
    A(f"ds_read_b128 {vr(vXF,4)}, v{vT+4} offset:8192")
    A(f"ds_read_b128 {vr(vXF+4,4)}, v{vT+4} offset:{8192+1024}")
    A(f"ds_read_b128 {vr(vXF+8,4)}, v{vT+4}")
    A(f"ds_read_b128 {vr(vXF+12,4)}, v{vT+4} offset:1024")

def q_frags_from_acc(dst):
    for i in range(32): A(f"v_accvgpr_read_b32 v{dst+i}, a{aPx+i}")
    for i in range(16): A(f"v_cvt_pk_bf16_f32 v{dst+i}, v{dst+2*i}, v{dst+2*i+1}")

def wait_side():
    l1=newlbl("w"); l2=newlbl("w")
    A(f"s_bitcmp1_b32 s{sMSide}, s{sT}")
    A(f"s_cbranch_scc1 {l1}")
    A("s_waitcnt vmcnt(16)")
    LBL(l1)
    A("s_waitcnt vmcnt(24)")

def expand(src, dst):
    A(f"v_mov_b32 v{dst}, v{src}")
    A("s_nop 1")
    A(f"v_permlane32_swap_b32 v{src}, v{dst}")

def main_kernel(name):
    L.append(f".globl {name}\n.p2align 8\n.type {name},@function")
    LBL(name)
    A("s_cmp_ge_u32 s2, 256")
    A("s_cbranch_scc1 L_done")
    A("s_load_dwordx8 s[60:67], s[0:1], 0")
    A("s_load_dwordx2 s[68:69], s[0:1], 32")
    A("s_load_dwordx2 s[70:71], s[0:1], 56")
    A("v_lshrrev_b32 v32, 6, v0")
    A("v_and_b32 v0, 63, v0")
    A(f"v_readfirstlane_b32 s{sW}, v32")
    A(f"v_lshlrev_b32 v{vL16}, 4, v0")
    A(f"v_lshlrev_b32 v{vL8}, 3, v0")
    A("v_lshrrev_b32 v33, 4, v0")
    A("v_and_b32 v34, 15, v0")
    A("v_xor_b32 v35, v34, v33")
    A("v_lshlrev_b32 v35, 4, v35")
    A(f"v_lshl_add_u32 v{vKd[0]}, v33, 8, v35")
    for n in range(1,4): A(f"v_xor_b32 v{vKd[n]}, {64*n}, v{vKd[0]}")
    A("v_lshlrev_b32 v35, 2, v33")
    A("v_xor_b32 v35, v34, v35")
    A("v_lshlrev_b32 v35, 4, v35")
    A(f"v_lshl_add_u32 v{vVd}, v33, 8, v35")
    A("v_mul_u32_u24 v36, 1152, v33")
    A(f"v_add_u32 v{vWod}, v36, v35")
    A("v_lshrrev_b32 v36, 3, v0")
    A("v_and_b32 v37, 1, v33")
    A("v_lshlrev_b32 v37, 2, v37")
    A("v_and_b32 v38, 7, v0")
    A("v_xor_b32 v37, v37, v38")
    A("v_lshlrev_b32 v37, 4, v37")
    A(f"v_lshl_add_u32 v{vWqd}, v36, 13, v37")
    A("v_mul_u32_u24 v36, 1152, v36")
    A(f"v_add_u32 v{vWxd}, v36, v37")
    A("v_and_b32 v36, 31, v0")
    A("v_lshrrev_b32 v37, 5, v0")
    A("v_mul_u32_u24 v38, 1152, v36")
    A(f"v_lshl_add_u32 v{vXd}, v37, 4, v38")
    A("v_and_b32 v38, 0x13, v36")
    A("v_and_b32 v39, 4, v36")
    A("v_lshl_or_b32 v38, v39, 1, v38")
    A("v_and_b32 v39, 8, v36")
    A("v_lshrrev_b32 v39, 1, v39")
    A("v_or_b32 v38, v38, v39")
    A("v_and_b32 v39, 15, v38")
    A("v_xor_b32 v39, v39, v37")
    A("v_lshlrev_b32 v39, 4, v39")
    A(f"v_lshl_add_u32 v{vKr}, v38, 8, v39")
    A("v_bfe_u32 v38, v0, 2, 2")
    A("v_lshl_add_u32 v39, v37, 3, v38")
    A("v_and_b32 v40, 1, v33")
    A("v_lshlrev_b32 v40, 5, v40")
    A("v_and_b32 v41, 1, v0")
    A("v_lshl_or_b32 v40, v41, 4, v40")
    A("v_and_b32 v41, 2, v0")
    A("v_lshl_or_b32 v40, v41, 2, v40")
    A(f"v_xor_b32 v41, s{sW}, v38")
    A("v_lshl_or_b32 v41, v41, 6, v40")
    A(f"v_lshl_add_u32 v{vVr}, v39, 8, v41")
    A("v_lshrrev_b32 v41, 1, v38")
    A("v_lshl_or_b32 v41, v41, 6, v40")
    A(f"v_lshl_add_u32 v{vWr}, v39, 7, v41")
    A(f"s_lshl_b32 s{sT0}, s{sW}, 5")
    A(f"v_xor_b32 v{vWrX}, s{sT0}, v{vWr}")
    A(f"s_lshl_b32 s{sRB}, s{sW}, 15")
    A(f"s_add_u32 s{sRE}, s{sRB}, 24576")
    A(f"s_mov_b32 s{sSS}, s{sRE}")
    A(f"s_xor_b32 s{sSSp}, s{sSS}, 32768")
    A(f"s_lshl_b32 s{sBw}, s{sW}, 13")
    A(f"s_add_u32 s{sBw}, s{sBw}, {AUX}")
    A(f"s_xor_b32 s{sBp}, s{sBw}, 8192")
    A(f"s_mov_b32 s{sC}, 0x{f2u(SCALE):08x}")
    A(f"s_mov_b32 s{sMConsW}, 0x000101ff")
    A(f"s_mov_b32 s{sMConsV}, 0x01fe0000")
    A(f"s_mov_b32 s{sMIssWq}, 0x000000ff")
    A(f"s_mov_b32 s{sMIssVo}, 0x00ff0000")
    A(f"s_mov_b32 s{sMSide}, 0x01ff01ff")
    A(f"s_mov_b32 s{sMBar}, 0x02000200")
    A(f"s_lshl_b32 s{sKoff}, s{sW}, 13")
    A(f"s_mov_b32 s{sVoff}, s{sKoff}")
    A(f"s_and_b32 s{sT2}, s2, 7")
    A(f"s_lshr_b32 s{sT3}, s2, 3")
    A(f"s_lshl_b32 s{sWqOff}, s{sT2}, 10")
    A(f"s_lshl_b32 s{sT0}, s{sW}, 7")
    A(f"s_add_u32 s{sWqOff}, s{sWqOff}, s{sT0}")
    A(f"s_mul_i32 s{sXoff}, s{sT3}, 36864")
    A(f"s_mul_i32 s{sWoOff}, s{sT2}, {512*1152}")
    A(f"s_mul_i32 s{sT0}, s{sW}, {64*1152}")
    A(f"s_add_u32 s{sWxOff}, s{sWoOff}, s{sT0}")
    A(f"s_add_u32 s{sWxOff}, s{sWxOff}, 1024")
    A(f"s_lshl_b32 s{sT0}, s{sW}, 8")
    A(f"s_add_u32 s{sWoOff}, s{sWoOff}, s{sT0}")
    A(f"s_mov_b32 s{sFree}, s{sRB}")
    A(f"s_mov_b32 s{sP}, 0")
    A("s_lshl_b32 s72, s2, 20")
    A("s_lshr_b32 s73, s2, 12")
    A("s_mul_i32 s74, s2, 73728")
    A("s_waitcnt lgkmcnt(0)")
    def mk(s, lo, hi, size, add=None):
        if add:
            A(f"s_add_u32 s{s}, s{lo}, s{add[0]}")
            A(f"s_addc_u32 s{s+1}, s{hi}, {add[1]}")
        else:
            A(f"s_mov_b32 s{s}, s{lo}"); A(f"s_mov_b32 s{s+1}, s{hi}")
        A(f"s_mov_b32 s{s+2}, {size}"); A(f"s_mov_b32 s{s+3}, 0x20000")
    mk(sWQ,66,67,576*8192)
    mk(sX,60,61,32*36864)
    mk(sK,62,63,1<<20,(72,"s73"))
    mk(sV,64,65,1<<20,(72,"s73"))
    mk(sWO,68,69,4096*1152)
    mk(sWS,70,71,73728,(74,"0"))
    R2=sT2; R1=sT3
    A(f"s_add_u32 s{R2}, s{sRB}, 16384")
    A(f"s_add_u32 s{R1}, s{sRB}, 8192")
    slots=[R2, sSS, sBw]; xfs=[48,64,80]
    for p in range(3): issue_wq(slots[p], xfs[p])
    issue_kv('K', sRB, sKoff)
    issue_kv('V', R1, sVoff)
    for i in range(0,128,2): A(f"v_pk_mov_b32 {vr(vO+i,2)}, 0, 0")
    A(f"v_mov_b32 v{vM0}, 0x{f2u(-1e30):08x}")
    A(f"v_mov_b32 v{vM1}, v{vM0}")
    A(f"v_pk_mov_b32 {vr(vL0,2)}, 0, 0")
    A(f"v_pk_mov_b32 {vr(vL1,2)}, 0, 0")
    for p in range(9):
        if p<3: n = (2-p)*12 + 16 + p*12
        else: n = min(2, 8-p)*12
        A(f"s_waitcnt vmcnt({n})")
        reads_W(slots[p%3], vWr)
        A("s_waitcnt lgkmcnt(0)")
        mfma_W(xfs[p%3], first=(p==0))
        if p+3<=8: issue_wq(slots[p%3], xfs[p%3])
        if p==6:
            pass
    issue_kv('K', R2, sKoff)
    A(f"s_sub_u32 s{sWqOff}, s{sWqOff}, {576*8192-512}")
    A(f"s_sub_u32 s{sXoff}, s{sXoff}, 1152")
    A("s_nop 3")
    q_frags_from_acc(vS[0])
    issue_wq(sSS, vXF)
    A(f"v_add_u32 v{vT}, s{sBw}, v{vL16}")
    for f in range(4): A(f"ds_write_b128 v{vT}, {vr(vS[0]+4*f,4)} offset:{f*1024}")
    A("s_waitcnt lgkmcnt(0)")
    A("s_barrier")
    A(f"v_add_u32 v{vT}, {AUX}, v{vL16}")
    for f in range(16): A(f"ds_read_b128 {ar(aQ+4*f,4)}, v{vT} offset:{(f>>2)*8192+(f&3)*1024}")
    for i in range(32): A(f"v_accvgpr_write_b32 a{aPx+i}, 0")
    A(f"s_mov_b32 s{sSlot}, s{sRB}")
    A(f"s_mov_b32 s{sT}, 0")
    A("s_waitcnt lgkmcnt(0)")
    if opt.debug_dump=='q':
        dump_q()
    L.append(".p2align 6")
    LBL("L_loop")
    wait_side()
    A(f"v_add_u32 v{vT}, s{sSlot}, v{vKr}")
    for s in range(1,8): A(f"v_xor_b32 v{vT+s}, {32*s}, v{vT}")
    for s in range(8): A(f"ds_read_b128 {ar(aKF+4*s,4)}, v{vT+s}")
    A("s_waitcnt lgkmcnt(0)")
    issue_kv('V', sSlot, sVoff)
    adv_slot()
    for s in range(8):
        for qt in range(2):
            c = "0" if s==0 else vr(vS[qt],16)
            A(f"{MFMA} {vr(vS[qt],16)}, {ar(aKF+4*s,4)}, {ar(aQ+32*qt+4*s,4)}, {c}")
    A("s_nop 7"); A("s_nop 3")
    vM=[vM0,vM1]; vX=[vX0,vX1]; vMs=[vMs0,vMs1]; vD=[vD0,vD1]; vAl=[vA0,vA1]; vLs=[vL0,vL1]
    for i in range(8):
        for qt in range(2):
            src = vM[qt] if i==0 else vX[qt]
            A(f"v_max3_f32 v{vX[qt]}, v{src}, v{vS[qt]+2*i}, v{vS[qt]+2*i+1}")
    A("s_nop 1")
    A(f"v_permlane32_swap_b32 v{vX0}, v{vX1}")
    A(f"v_max_f32 v{vX0}, v{vX0}, v{vX1}")
    expand(vX0, vX1)
    for qt in range(2): A(f"v_sub_f32 v{vD[qt]}, v{vM[qt]}, v{vX[qt]}")
    for qt in range(2): A(f"v_mul_f32 v{vMs[qt]}, s{sC}, v{vX[qt]}")
    for qt in range(2): A(f"v_mul_f32 v{vD[qt]}, s{sC}, v{vD[qt]}")
    for qt in range(2): A(f"v_mov_b32 v{vM[qt]}, v{vX[qt]}")
    for qt in range(2): A(f"v_exp_f32 v{vAl[qt]}, v{vD[qt]}")
    for i in range(16):
        for qt in range(2): A(f"v_fma_f32 v{vS[qt]+i}, v{vS[qt]+i}, s{sC}, -v{vMs[qt]}")
    for qt in range(2): A(f"v_pk_mul_f32 {vr(vLs[qt],2)}, {vr(vLs[qt],2)}, {vr(vAl[qt],2)} op_sel_hi:[1,0]")
    for i in range(16):
        for qt in range(2): A(f"v_exp_f32 v{vS[qt]+i}, v{vS[qt]+i}")
    for t in range(4):
        for qt in range(2):
            for i in range(0,16,2):
                o=Oreg(t,qt)+i
                A(f"v_pk_mul_f32 {vr(o,2)}, {vr(o,2)}, {vr(vAl[qt],2)} op_sel_hi:[1,0]")
    for i in range(8):
        for qt in range(2): A(f"v_pk_add_f32 {vr(vLs[qt],2)}, {vr(vLs[qt],2)}, {vr(vS[qt]+2*i,2)}")
    for i in range(8):
        for qt in range(2): A(f"v_cvt_pk_bf16_f32 v{vS[qt]+i}, v{vS[qt]+2*i}, v{vS[qt]+2*i+1}")
    wait_side()
    reads_V(sSlot, aVF)
    A(f"s_and_b32 s{sT1}, s{sT}, 15")
    A(f"s_mov_b32 s{sFree}, s{sSlot}")
    A(f"s_cmp_eq_u32 s{sT1}, 15")
    A("s_waitcnt lgkmcnt(0)")
    A("s_cbranch_scc1 L_skipK")
    issue_kv('K', sSlot, sKoff)
    LBL("L_skipK")
    adv_slot()
    for u in range(2):
        for t in range(4):
            for qt in range(2):
                A(f"{MFMA} {vr(Oreg(t,qt),16)}, {ar(aVF+8*t+4*u,4)}, {vr(vS[qt]+4*u,4)}, {vr(Oreg(t,qt),16)}")
    A(f"s_bitcmp1_b32 s{sMSide}, s{sT}")
    A("s_cbranch_scc0 L_noside")
    A("s_waitcnt vmcnt(16)")
    A(f"s_bitcmp1_b32 s{sMConsW}, s{sT}")
    A("s_cbranch_scc0 L_consV")
    reads_W(sSS, vWr)
    A("s_waitcnt lgkmcnt(0)")
    mfma_W(vXF)
    A("s_branch L_issue")
    LBL("L_consV")
    reads_V(sSS, aKF)
    reads_OF(sP)
    A(f"s_add_u32 s{sP}, s{sP}, 1")
    A("s_waitcnt lgkmcnt(0)")
    mfma_O()
    LBL("L_issue")
    A(f"s_bitcmp1_b32 s{sMIssWq}, s{sT}")
    A("s_cbranch_scc0 L_issVo")
    issue_wq(sSS, vXF)
    A("s_branch L_noside")
    LBL("L_issVo")
    A(f"s_bitcmp1_b32 s{sMIssVo}, s{sT}")
    A("s_cbranch_scc0 L_noside")
    issue_wo(sSS)
    LBL("L_noside")
    A(f"s_bitcmp1_b32 s{sMBar}, s{sT}")
    A("s_cbranch_scc0 L_nobar")
    A("s_barrier")
    LBL("L_nobar")
    A(f"s_add_u32 s{sT}, s{sT}, 1")
    A(f"s_and_b32 s{sT1}, s{sT}, 15")
    A("s_cbranch_scc1 L_loop")
    A(f"s_cmp_eq_u32 s{sT}, 32")
    A("s_cbranch_scc0 L_c0")
    A("s_waitcnt vmcnt(0)")
    A(f"s_add_u32 s{sTail}, s{sRB}, 8192")
    issue_wx(sTail)
    A(f"s_add_u32 s{sTail}, s{sRB}, 16384")
    issue_wo(sTail)
    A("s_branch L_c1")
    LBL("L_c0")
    q_frags_from_acc(vS[0])
    A(f"v_add_u32 v{vT}, s{sFree}, v{vL16}")
    for f in range(4): A(f"ds_write_b128 v{vT}, {vr(vS[0]+4*f,4)} offset:{1024+f*1024}")
    LBL("L_c1")
    A(f"v_add_f32 v{vL0}, v{vL0}, v{vL0+1}")
    A(f"v_add_f32 v{vL1}, v{vL1}, v{vL1+1}")
    A(f"v_add_u32 v{vT}, s{sSS}, v{vL16}")
    A(f"v_add_u32 v{vT+1}, s{sBw}, v{vL16}")
    A(f"v_permlane32_swap_b32 v{vM0}, v{vM1}")
    A(f"v_permlane32_swap_b32 v{vL0}, v{vL1}")
    A(f"v_add_u32 v{vT+2}, s{sFree}, v{vL8}")
    A(f"v_mov_b32 v{vD0}, v{vM0}")
    A(f"v_add_f32 v{vD1}, v{vL0}, v{vL1}")
    for i in range(8): A(f"ds_write_b128 v{vT}, {vr(Oreg(1,0)+4*i,4)} offset:{i*1024}")
    for i in range(8): A(f"ds_write_b128 v{vT+1}, {vr(Oreg(3,0)+4*i,4)} offset:{i*1024}")
    A(f"ds_write_b64 v{vT+2}, {vr(vD0,2)}")
    A(f"v_add_u32 v{vS[1]}, s{sSSp}, v{vL16}")
    A(f"v_add_u32 v{vS[1]+1}, s{sBp}, v{vL16}")
    A(f"v_xor_b32 v{vS[1]+2}, 32768, v{vT+2}")
    A("s_waitcnt lgkmcnt(0)")
    A("s_barrier")
    A(f"ds_read_b64 {vr(vMs0,2)}, v{vS[1]+2}")
    for i in range(8): A(f"ds_read_b128 {vr(vRCV+4*i,4)}, v{vS[1]} offset:{i*1024}")
    for i in range(8): A(f"ds_read_b128 {vr(vRCV+32+4*i,4)}, v{vS[1]+1} offset:{i*1024}")
    A(f"s_cmp_eq_u32 s{sT}, 32")
    A("s_cbranch_scc1 L_c2")
    A(f"s_sub_u32 s{sT0}, s{sFree}, s{sRB}")
    A(f"v_add_u32 v{vS[1]+3}, s{sT0}, v{vL16}")
    A(f"v_add_u32 v{vS[1]+4}, 65536, v{vS[1]+3}")
    for f in range(16):
        A(f"ds_read_b128 {ar(aQ+4*f,4)}, v{vS[1]+3+(f>>3)} offset:{((f>>2)&1)*32768+1024+(f&3)*1024}")
    LBL("L_c2")
    A("s_waitcnt lgkmcnt(0)")
    def factors(final):
        A(f"v_max_f32 v{vX0}, v{vD0}, v{vMs0}")
        A(f"v_sub_f32 v{vD0}, v{vD0}, v{vX0}")
        A(f"v_sub_f32 v{vMs0}, v{vMs0}, v{vX0}")
        A(f"v_mul_f32 v{vD0}, s{sC}, v{vD0}")
        A(f"v_mul_f32 v{vMs0}, s{sC}, v{vMs0}")
        A(f"v_exp_f32 v{vA0}, v{vD0}")
        A(f"v_exp_f32 v{vL0}, v{vMs0}")
        A(f"v_mov_b32 v{vD0}, v{vX0}")
        A(f"v_mul_f32 v{vD1}, v{vD1}, v{vA0}")
        A(f"v_fmac_f32 v{vD1}, v{vMs1}, v{vL0}")
        if final:
            A(f"v_rcp_f32 v{vX1}, v{vD1}")
            A("s_nop 0")
            A(f"v_mul_f32 v{vA0}, v{vA0}, v{vX1}")
            A(f"v_mul_f32 v{vL0}, v{vL0}, v{vX1}")
        A(f"v_mov_b32 v{vA1}, v{vA0}")
        A(f"v_mov_b32 v{vL1}, v{vL0}")
        A("s_nop 1")
        A(f"v_permlane32_swap_b32 v{vA0}, v{vA1}")
        A(f"v_permlane32_swap_b32 v{vL0}, v{vL1}")
    def merge(t, rbase):
        for qt in range(2):
            for i in range(0,16,2):
                r=rbase+16*qt+i
                A(f"v_pk_mul_f32 {vr(r,2)}, {vr(r,2)}, {vr(vLs[qt],2)} op_sel_hi:[1,0]")
        for qt in range(2):
            for i in range(0,16,2):
                r=rbase+16*qt+i; o=Oreg(t,qt)+i
                A(f"v_pk_fma_f32 {vr(o,2)}, {vr(o,2)}, {vr(vAl[qt],2)}, {vr(r,2)} op_sel_hi:[1,0,1]")
    factors(False)
    merge(2, vRCV+32)
    for i in range(8): A(f"ds_write_b128 v{vS[1]}, {vr(Oreg(2,0)+4*i,4)} offset:{i*1024}")
    A(f"v_add_u32 v{vS[1]+2}, s{sBp}, v{vL8}")
    A(f"ds_write_b64 v{vS[1]+2}, {vr(vD0,2)} offset:4096")
    merge(0, vRCV)
    A(f"v_xor_b32 v{vS[1]+3}, 65536, v{vS[1]}")
    A(f"v_xor_b32 v{vS[1]+4}, 16384, v{vS[1]+2}")
    A("s_waitcnt lgkmcnt(0)")
    A("s_barrier")
    A(f"ds_read_b64 {vr(vMs0,2)}, v{vS[1]+4} offset:4096")
    for i in range(8): A(f"ds_read_b128 {vr(vRCV+4*i,4)}, v{vS[1]+3} offset:{i*1024}")
    A(f"s_cmp_eq_u32 s{sT}, 32")
    A("s_cbranch_scc1 L_c3")
    issue_kv('K', sFree, sKoff)
    for i in range(96): A(f"v_accvgpr_write_b32 a{aPm+i}, 0")
    LBL("L_c3")
    A("s_waitcnt lgkmcnt(0)")
    factors(True)
    merge(0, vRCV)
    for i in range(16): A(f"v_cvt_pk_bf16_f32 v{vRCV+i}, v{Oreg(0,0)+2*i}, v{Oreg(0,0)+2*i+1}")
    for f in range(4): A(f"ds_write_b128 v{vS[1]+1}, {vr(vRCV+4*f,4)} offset:{f*1024}")
    A(f"v_mov_b32 v{vM0}, 0x{f2u(-1e30):08x}")
    A(f"v_mov_b32 v{vM1}, v{vM0}")
    A("s_waitcnt lgkmcnt(0)")
    A("s_barrier")
    if opt.debug_dump=='o': dump_o()
    reads_XFx()
    A(f"s_mov_b32 s{sP}, 0")
    A(f"s_cmp_eq_u32 s{sT}, 32")
    A("s_cbranch_scc1 L_tail")
    A(f"v_mov_b32 v{vWr}, v{vWrX}")
    issue_wx(sSS)
    A("s_waitcnt lgkmcnt(0)")
    A("s_branch L_loop")
    LBL("L_tail")
    issue_wo(sSS)
    issue_wo(sRB)
    A(f"s_add_u32 s{sTail}, s{sRB}, 8192")
    A("s_waitcnt vmcnt(24)")
    reads_W(sTail, vWr)
    A("s_waitcnt lgkmcnt(0)")
    issue_wo(sTail)
    mfma_W(vXF)
    A(f"s_add_u32 s{sRE}, s{sRB}, 32768")
    A(f"s_add_u32 s{sSlot}, s{sRB}, 16384")
    LBL("L_tl")
    A(f"s_cmp_ge_u32 s{sP}, 4")
    A("s_cbranch_scc1 L_tl_drain")
    A("s_waitcnt vmcnt(24)")
    reads_V(sSlot, aKF)
    reads_OF(sP)
    A("s_waitcnt lgkmcnt(0)")
    issue_wo(sSlot)
    A("s_branch L_tl_go")
    LBL("L_tl_drain")
    for p in range(4,8):
        l=newlbl("d")
        A(f"s_cmp_lg_u32 s{sP}, {p}")
        A(f"s_cbranch_scc1 {l}")
        A(f"s_waitcnt vmcnt({(7-p)*8})")
        LBL(l)
    reads_V(sSlot, aKF)
    reads_OF(sP)
    A("s_waitcnt lgkmcnt(0)")
    LBL("L_tl_go")
    mfma_O()
    adv_slot()
    A(f"s_add_u32 s{sP}, s{sP}, 1")
    A(f"s_cmp_lt_u32 s{sP}, 8")
    A("s_cbranch_scc1 L_tl")
    A(f"v_add_u32 v{vT}, s{sRB}, v{vL16}")
    for i in range(2,8): A(f"ds_write_b128 v{vT}, {ar(aPx+4*i,4)} offset:{i*1024}")
    for i in range(8): A(f"v_accvgpr_read_b32 v{vS[0]+i}, a{aPx+i}")
    for b in range(1,4): A(f"v_xor_b32 v{vT+b}, {b*32768}, v{vT}")
    A(f"s_mul_i32 s{sT1}, s{sW}, 18432")
    for i in range(16):
        if i%4==0: A(f"s_add_u32 s{sT0}, s{sT1}, {i*1024}")
        A(f"buffer_store_dwordx4 {ar(aPm+4*i,4)}, v{vL16}, {srd(sWS)}, s{sT0} offen offset:{(i&3)*1024} {opt.part_flags}")
    A("s_waitcnt lgkmcnt(0)")
    A("s_barrier")
    for b in range(1,4):
        for j in range(2): A(f"ds_read_b128 {vr(vRCV+8*b+4*j,4)}, v{vT+b} offset:{(2*b+j)*1024}")
    A(f"s_add_u32 s{sT0}, s{sT1}, {16*1024}")
    A("s_waitcnt lgkmcnt(0)")
    for b in range(1,4):
        for i in range(0,8,2): A(f"v_pk_add_f32 {vr(vS[0]+i,2)}, {vr(vS[0]+i,2)}, {vr(vRCV+8*b+i,2)}")
    for j in range(2):
        A(f"buffer_store_dwordx4 {vr(vS[0]+4*j,4)}, v{vL16}, {srd(sWS)}, s{sT0} offen offset:{j*1024} {opt.part_flags}")
    LBL("L_done")
    A("s_endpgm")

def dbg_srd():
    A("s_lshl_b32 s80, s2, 15")
    A("s_add_u32 s80, s80, 0x2000000")
    A("s_add_u32 s76, s70, s80"); A("s_addc_u32 s77, s71, 0"); A("s_mov_b32 s78, 32768"); A("s_mov_b32 s79, 0x20000")
def dump_q():
    dbg_srd()
    l=newlbl("dq")
    A(f"s_cmp_lg_u32 s{sW}, 0"); A(f"s_cbranch_scc1 {l}")
    for f in range(16):
        A(f"s_mov_b32 s81, {f*1024}")
        A(f"buffer_store_dwordx4 {ar(aQ+4*f,4)}, v{vL16}, s[76:79], s81 offen")
    A("s_waitcnt vmcnt(0)")
    LBL(l)
def dump_o():
    dbg_srd()
    A(f"v_add_u32 v{vT}, s{sBw}, v{vL16}")
    for f in range(4): A(f"ds_read_b128 {vr(vRCV+4*f,4)}, v{vT} offset:{f*1024}")
    A(f"s_lshr_b32 s81, s{sT}, 5"); A("s_lshl_b32 s81, s81, 14")
    A(f"s_lshl_b32 s82, s{sW}, 12"); A("s_add_u32 s81, s81, s82")
    A("s_waitcnt lgkmcnt(0)")
    for f in range(4): A(f"buffer_store_dwordx4 {vr(vRCV+4*f,4)}, v{vL16}, s[76:79], s81 offen offset:{f*1024}")
    A("s_waitcnt vmcnt(0)")

def reduce_kernel(name):
    L.append(f".globl {name}\n.p2align 8\n.type {name},@function")
    LBL(name)
    A("s_cmp_ge_u32 s2, 1152")
    A("s_cbranch_scc1 L_rdone")
    A("s_load_dwordx2 s[4:5], s[0:1], 56")
    A("s_load_dwordx2 s[6:7], s[0:1], 40")
    A("s_mul_hi_u32 s8, s2, 0x1c71c71d")
    A("s_mul_i32 s9, s8, 9")
    A("s_sub_u32 s9, s2, s9")
    A("s_and_b32 s10, s8, 3")
    A("s_lshr_b32 s11, s8, 2")
    A(f"s_mul_i32 s12, s11, {8*73728}")
    A("s_mul_i32 s13, s10, 18432")
    A("s_add_u32 s12, s12, s13")
    A("s_lshl_b32 s13, s9, 11")
    A("s_add_u32 s12, s12, s13")
    A("v_lshlrev_b32 v1, 4, v0")
    A("s_lshr_b32 s13, s9, 1")
    A("s_xor_b32 s13, s13, s10")
    A("s_lshl_b32 s13, s13, 5")
    A("s_lshl_b32 s14, s10, 7")
    A("s_add_u32 s13, s13, s14")
    A("s_and_b32 s14, s9, 1")
    A("s_lshl_b32 s14, s14, 4")
    A("s_add_u32 s13, s13, s14")
    A("s_lshl_b32 s14, s10, 4")
    A("s_add_u32 s14, s14, 512")
    A("s_cmp_eq_u32 s9, 8")
    A("s_cselect_b32 s13, s14, s13")
    A("s_lshl_b32 s13, s13, 1")
    A("s_mul_i32 s14, s11, 36864")
    A("s_add_u32 s13, s13, s14")
    A("v_and_b32 v2, 31, v0")
    A("v_mul_u32_u24 v2, 1152, v2")
    A("v_lshrrev_b32 v3, 5, v0")
    A("v_lshl_add_u32 v2, v3, 4, v2")
    A("s_waitcnt lgkmcnt(0)")
    A("s_mov_b32 s16, s4"); A("s_mov_b32 s17, s5"); A(f"s_mov_b32 s18, {256*73728}"); A("s_mov_b32 s19, 0x20000")
    A("s_mov_b32 s20, s6"); A("s_mov_b32 s21, s7"); A(f"s_mov_b32 s22, {1024*1152}"); A("s_mov_b32 s23, 0x20000")
    for hp in range(8):
        A(f"buffer_load_dwordx4 {vr(8+8*hp,4)}, v1, s[16:19], s12 offen {opt.red_flags}")
        A(f"buffer_load_dwordx4 {vr(12+8*hp,4)}, v1, s[16:19], s12 offen offset:1024 {opt.red_flags}")
        if hp<7: A("s_add_u32 s12, s12, 73728")
    for hp in range(1,8):
        A(f"s_waitcnt vmcnt({14-2*hp})")
        for i in range(0,8,2): A(f"v_pk_add_f32 {vr(8+i,2)}, {vr(8+i,2)}, {vr(8+8*hp+i,2)}")
    for i in range(4): A(f"v_cvt_pk_bf16_f32 v{4+i}, v{8+2*i}, v{9+2*i}")
    A("buffer_store_dwordx4 v[4:7], v2, s[20:23], s13 offen")
    LBL("L_rdone")
    A("s_endpgm")

def desc(name, vgpr, acc, sgpr):
    return f""".p2align 6
.amdhsa_kernel {name}
  .amdhsa_next_free_vgpr {vgpr}
  .amdhsa_next_free_sgpr {sgpr}
  .amdhsa_accum_offset {acc}
  .amdhsa_group_segment_fixed_size 0
  .amdhsa_kernarg_size 64
  .amdhsa_user_sgpr_count 2
  .amdhsa_user_sgpr_kernarg_segment_ptr 1
  .amdhsa_system_sgpr_workgroup_id_x 1
  .amdhsa_float_denorm_mode_32 3
  .amdhsa_float_denorm_mode_16_64 3
.end_amdhsa_kernel"""

HEADER = open('standalone__gqa_block_cached__sampling.s.ref').read().split('; Override launch')[0]
def build(path):
    global L
    L.clear(); uid[0]=0
    K1="standalone__gqa_block_cached__sampling_kernel"; K2="gqa_reduce_kernel"
    main_kernel(K1)
    reduce_kernel(K2)
    out = HEADER + f"; @launch kernel={K1} grid=(256,1,1) block=(256,1,1) lds=163840\n"
    out += f"; @launch kernel={K2} grid=(1152,1,1) block=(64,1,1) lds=0\n"
    out += '.amdgcn_target "amdgcn-amd-amdhsa--gfx950"\n.text\n' + "\n".join(L) + "\n"
    out += '.section .rodata,"a"\n' + desc(K1,512,256,96) + "\n" + desc(K2,72,72,32) + "\n"
    open(path,'w').write(out)

if __name__=='__main__':
    path = sys.argv[1]
    for a in sys.argv[2:]:
        k,v = a.split('=',1); setattr(opt,k,v)
    build(path)
```

```python
import sys, math, struct

class Opt:
    kv_flags = "nt"
    part_flags = ""
    red_flags = ""
    stamps = None
    fine = None
    thr = 8.0
    N = 6
opt = Opt()

L = []
def A(s): L.append("    " + s)
def LBL(s): L.append(s + ":")
def f2u(x): return struct.unpack('<I', struct.pack('<f', x))[0]
SCALE = math.log2(math.e) / math.sqrt(128.0)

sK, sV, sWQ, sWO, sX, sWS = 4, 8, 12, 16, 20, 24
def srd(b): return f"s[{b}:{b+3}]"
sW=28; sT=29; sSlot=30; sRB=31; sRE=32; sKoff=33; sVoff=34; sT0=35; sT1=36; sC=37; sSS=38
sWqOff=39; sXoff=40; sWoOff=41; sMConsW=42; sMXrd=43; sMIssWq=44; sMIssVo=45; sMSide=46; sP=47
sFree=48; sBw=49; sBp=50; sSSp=51; sT2=52; sT3=53; sWxOff=54; sMSpec=55; sTail=56; sFirst=57; sThr=58
vL16=1; vKd=[2,3,4,5]; vVd=6; vWqd=7; vWod=8; vWxd=9; vXr=10; vKr=11; vVr=12; vWr=13; vWrX=14
vMs=[15,16]; vL8=17
vLs=[18,20]
vAl=[22,24]
vMf=[26,27]
vX0=28; vX1=29; vD0=30; vD1=31
vT=32
vX=[48,64]
vY=[80,96]
vP=[112,120]
vO=128
def Oreg(t,qt): return vO+32*t+16*qt
aQ=0; aKF=64; aVF=96; aPm=128; aPx=192; aXF=224
def vr(b,n): return f"v[{b}:{b+n-1}]"
def ar(b,n): return f"a[{b}:{b+n-1}]"
AUX=131072
MFMA="v_mfma_f32_32x32x16_bf16"
uid=[0]
def newlbl(p):
    uid[0]+=1; return f"L_{p}_{uid[0]}"

def stamp(idx, reg=0, plusT=False):
    if not opt.stamps: return
    A("s_memrealtime s[84:85]")
    if plusT: A(f"s_add_u32 m0, s{sT}, {idx}")
    else: A(f"s_mov_b32 m0, {idx}")
    A("s_waitcnt lgkmcnt(0)")
    A(f"v_writelane_b32 v{reg}, s84, m0")
def cyc(idx, reg=0):
    if not opt.stamps: return
    A("s_memtime s[84:85]"); A(f"s_mov_b32 m0, {idx}"); A("s_waitcnt lgkmcnt(0)"); A(f"v_writelane_b32 v{reg}, s84, m0")
def fine(idx):
    if not opt.fine: return
    l=newlbl("f")
    A(f"s_cmp_lg_u32 s{sT}, {opt.fine}")
    A(f"s_cbranch_scc1 {l}")
    cyc(idx, 25)
    LBL(l)
def stamp_out():
    A("s_lshl_b32 s80, s2, 2"); A(f"s_add_u32 s80, s80, s{sW}"); A("s_mul_i32 s80, s80, 768")
    A("s_add_u32 s80, s80, 0x4000000")
    A("s_add_u32 s76, s70, s80"); A("s_addc_u32 s77, s71, 0"); A("s_mov_b32 s78, 768"); A("s_mov_b32 s79, 0x20000")
    A(f"v_lshrrev_b32 v{vT}, 2, v{vL16}")
    A(f"buffer_store_dword v0, v{vT}, s[76:79], 0 offen")
    A(f"buffer_store_dword v23, v{vT}, s[76:79], 0 offen offset:256")
    A(f"buffer_store_dword v25, v{vT}, s[76:79], 0 offen offset:512")

def emit(lst):
    for x in lst:
        if x.endswith(":"): L.append(x)
        else: A(x)
def I_kv(kind, slot, soff):
    s = sK if kind=='K' else sV
    r=[f"s_mov_b32 m0, s{slot}", f"s_add_u32 s{sT0}, s{soff}, 4096"]
    for n in range(4):
        v = vKd[n] if kind=='K' else vVd
        r.append(f"buffer_load_dwordx4 v{v}, {srd(s)}, s{soff} offen offset:{n*1024} {opt.kv_flags} lds")
    r += [f"s_add_u32 m0, s{slot}, 4096", f"s_add_u32 s{soff}, s{soff}, 32768"]
    for n in range(4):
        v = vKd[n] if kind=='K' else vVd
        r.append(f"buffer_load_dwordx4 v{v}, {srd(s)}, s{sT0} offen offset:{n*1024} {opt.kv_flags} lds")
    return r
def I_kvt(kind, slot, soff):
    r=[]
    for x in I_kv(kind, slot, soff):
        if x.startswith("buffer_") and int(opt.N)>0: r.append(f"s_waitcnt vmcnt({int(opt.N)-1}) ")
        r.append(x)
    return r
def merge_even(a, b):
    groups=[]; cur=[]
    for x in a:
        cur.append(x)
        if x.startswith("buffer_"): groups.append(cur); cur=[]
    if cur: groups[-1]+=cur
    tot=sum(cost(x) for x in b); out=[]; acc=0; g=0
    for i,x in enumerate(b):
        while g<len(groups) and acc>=tot*g/len(groups) and not (out and glued(out[-1])):
            out+=groups[g]; g+=1
        out.append(x); acc+=cost(x)
    while g<len(groups): out+=groups[g]; g+=1
    return out
def I_unit(s, vd, slot, soff, step, adv, n_instr=8):
    r=[]
    for n in range(n_instr):
        if n==0: r.append(f"s_mov_b32 m0, s{slot}")
        if n==4: r.append(f"s_add_u32 m0, s{slot}, 4096")
        r.append(f"s_add_u32 s{sT0}, s{soff}, {n*step-(n&3)*1024}")
        v = vd[n&3] if isinstance(vd,list) else vd
        r.append(f"buffer_load_dwordx4 v{v}, {srd(s)}, s{sT0} offen offset:{(n&3)*1024} lds")
    if adv: r.append(f"s_add_u32 s{soff}, s{soff}, {adv}")
    return r
def I_wq(slot): return I_unit(sWQ, vWqd, slot, sWqOff, 8*8192, 64*8192)
def I_wo(slot): return I_unit(sWO, vWod, slot, sWoOff, 4*1152, 32*1152)
def I_wx(slot): return I_unit(sWO, vWxd, slot, sWxOff, 8*1152, 256*1152)
def I_adv():
    return [f"s_add_u32 s{sSlot}, s{sSlot}, 8192", f"s_cmp_ge_u32 s{sSlot}, s{sRE}", f"s_cselect_b32 s{sSlot}, s{sRB}, s{sSlot}"]
def I_rdW(slot, vbase, dst):
    r=[f"v_add_u32 v{vT}, s{slot}, v{vbase}", f"v_xor_b32 v{vT+1}, 64, v{vT}"]
    for u in range(4):
        for tau in range(2):
            for w2 in range(2):
                r.append(f"ds_read_b64_tr_b16 {ar(dst+4*(u*2+tau)+2*w2,2)}, v{vT+tau} offset:{u*2048+w2*512}")
    return r
def I_mmW(src, xf, first=False):
    r=[]
    for u in range(4):
        for tau in range(2):
            c = "0" if (first and u==0) else ar(aPx+16*tau,16)
            r.append(f"{MFMA} {ar(aPx+16*tau,16)}, {ar(src+4*(u*2+tau),4)}, {xf(u)}, {c}")
    return r
def I_rdV(slot, dst):
    r=[f"v_add_u32 v{vT}, s{slot}, v{vVr}"]
    for t in range(1,4): r.append(f"v_xor_b32 v{vT+t}, {64*t}, v{vT}")
    for u in range(2):
        for t in range(4):
            for w2 in range(2):
                r.append(f"ds_read_b64_tr_b16 {ar(dst+8*t+4*u+2*w2,2)}, v{vT+t} offset:{u*4096+w2*1024}")
    return r
def I_rdK(slot, dst):
    r=[f"v_add_u32 v{vT+8}, s{slot}, v{vKr}", f"ds_read_b128 {ar(dst,4)}, v{vT+8}"]
    for s in range(1,8):
        r.append(f"v_xor_b32 v{vT+8+s}, {32*s}, v{vT+8}")
        r.append(f"ds_read_b128 {ar(dst+4*s,4)}, v{vT+8+s}")
    return r
def I_rdOF(preg):
    return [f"s_and_b32 s{sT0}, s{preg}, 3", f"s_xor_b32 s{sT0}, s{sT0}, 1", f"s_lshl_b32 s{sT0}, s{sT0}, 13",
            f"s_lshr_b32 s{sT1}, s{preg}, 2", f"s_lshl_b32 s{sT1}, s{sT1}, 11", f"s_add_u32 s{sT0}, s{sT0}, s{sT1}",
            f"s_add_u32 s{sT0}, s{sT0}, {AUX}", f"v_add_u32 v{vT+4}, s{sT0}, v{vL16}",
            f"ds_read_b128 {ar(aXF,4)}, v{vT+4}", f"ds_read_b128 {ar(aXF+4,4)}, v{vT+4} offset:1024"]
def I_mmO(src):
    return [f"{MFMA} {ar(aPm+16*t,16)}, {ar(src+8*t+4*u,4)}, {ar(aXF+4*u,4)}, {ar(aPm+16*t,16)}" for u in range(2) for t in range(4)]
def I_rdXFx():
    return [f"s_lshl_b32 s{sT0}, s{sW}, 1", f"s_and_b32 s{sT0}, s{sT0}, 3", f"s_lshl_b32 s{sT0}, s{sT0}, 13",
            f"s_lshr_b32 s{sT1}, s{sW}, 1", f"s_lshl_b32 s{sT1}, s{sT1}, 11", f"s_add_u32 s{sT0}, s{sT0}, s{sT1}",
            f"s_add_u32 s{sT0}, s{sT0}, {AUX}", f"v_add_u32 v{vT+4}, s{sT0}, v{vL16}",
            f"ds_read_b128 {ar(aXF,4)}, v{vT+4} offset:8192", f"ds_read_b128 {ar(aXF+4,4)}, v{vT+4} offset:{8192+1024}",
            f"ds_read_b128 {ar(aXF+8,4)}, v{vT+4}", f"ds_read_b128 {ar(aXF+12,4)}, v{vT+4} offset:1024"]
def I_qfrags(dst):
    return [f"v_accvgpr_read_b32 v{dst+i}, a{aPx+i}" for i in range(32)] + \
           [f"v_cvt_pk_bf16_f32 v{dst+i}, v{dst+2*i}, v{dst+2*i+1}" for i in range(16)]
def I_wait_side(n=16):
    l1=newlbl("w")
    return [f"s_bitcmp1_b32 s{sMSide}, s{sT}\n    s_cbranch_scc1 {l1}\n    s_waitcnt vmcnt({n})\n{l1}:\n    s_waitcnt vmcnt({n+8}) ; WS"]
def fix_ws(lst, base):
    k=0; out=[]
    for x in lst:
        if x.endswith("; WS"): x=I_wait_side(base+k)[0]
        if x.startswith("buffer_"): k+=1
        out.append(x)
    return out
def I_qk():
    r=[]
    for qt in range(2):
        for s in range(8):
            c = "0" if s==0 else vr(vX[qt],16)
            r.append(f"{MFMA} {vr(vX[qt],16)}, {ar(aKF+4*s,4)}, {ar(aQ+32*qt+4*s,4)}, {c}")
    return r
def I_fma(qt): return [f"v_fma_f32 v{vY[qt]+i}, v{vX[qt]+i}, s{sC}, -v{vMs[qt]}" for i in range(16)]
def I_pv():
    return [f"{MFMA} {vr(Oreg(t,qt),16)}, {ar(aVF+8*t+4*u,4)}, {vr(vP[qt]+4*u,4)}, {vr(Oreg(t,qt),16)}"
            for u in range(2) for t in range(4) for qt in range(2)]
def I_expsum():
    r=[]; pend=[]
    for qt in range(2):
        for j in range(8):
            y=vY[qt]+2*j
            r += [f"v_exp_f32 v{y}, v{y}", f"v_exp_f32 v{y+1}, v{y+1}"]
            r += pend
            pend=[f"v_pk_add_f32 {vr(vLs[qt],2)}, {vr(vLs[qt],2)}, {vr(y,2)}", f"v_cvt_pk_bf16_f32 v{vP[qt]+j}, v{y}, v{y+1}"]
    return r, pend
def cost(x):
    if x.endswith(":"): return 0
    if x.endswith("; WS"): return 12
    if x.startswith("v_exp"): return 8
    if x.startswith("buffer_"): return 12
    if x.startswith("ds_"): return 6
    if x.startswith("v_pk") or x.startswith("v_cvt"): return 5
    return 4
def weave(mf, fill):
    tot=sum(cost(x) for x in fill); out=[]; i=0; acc=0
    for k,m in enumerate(mf):
        out.append(m)
        tgt=tot*(k+1)/len(mf)
        while i<len(fill) and (acc+cost(fill[i])/2<=tgt or k==len(mf)-1 or fill[i].endswith(":") or (i>0 and glued(fill[i-1]))):
            out.append(fill[i]); acc+=cost(fill[i]); i+=1
    return out
def glued(x):
    return x.startswith("s_cmp")

def main_kernel(name):
    L.append(f".globl {name}\n.p2align 8\n.type {name},@function")
    LBL(name)
    A("s_cmp_ge_u32 s2, 256")
    A("s_cbranch_scc1 L_done")
    A("s_load_dwordx8 s[60:67], s[0:1], 0")
    A("s_load_dwordx2 s[68:69], s[0:1], 32")
    A("s_load_dwordx2 s[70:71], s[0:1], 56")
    A("v_lshrrev_b32 v32, 6, v0")
    A("v_and_b32 v31, 63, v0")
    A(f"v_readfirstlane_b32 s{sW}, v32")
    A("v_lshrrev_b32 v33, 4, v31")
    A("v_and_b32 v34, 15, v31")
    A("v_xor_b32 v35, v34, v33")
    A("v_lshlrev_b32 v35, 4, v35")
    A(f"v_lshl_add_u32 v{vKd[0]}, v33, 8, v35")
    A("v_mul_u32_u24 v36, 1152, v33")
    for n in range(4):
        A(f"v_xor_b32 v{44+n}, {64*n}, v35")
        A(f"v_add_u32 v{44+n}, v36, v{44+n}")
    A("v_lshrrev_b32 v38, 3, v31")
    A("v_and_b32 v37, 1, v33")
    A("v_lshlrev_b32 v37, 2, v37")
    A("v_and_b32 v39, 7, v31")
    A("v_xor_b32 v37, v37, v39")
    A("v_lshlrev_b32 v37, 4, v37")
    A(f"v_lshl_add_u32 v{vWqd}, v38, 13, v37")
    A("v_mul_u32_u24 v38, 1152, v38")
    A(f"v_add_u32 v{vWxd}, v38, v37")
    for n in range(1,4): A(f"v_xor_b32 v{vKd[n]}, {64*n}, v{vKd[0]}")
    A(f"s_lshl_b32 s{sRB}, s{sW}, 15")
    A(f"s_add_u32 s{sRE}, s{sRB}, 24576")
    A(f"s_mov_b32 s{sSS}, s{sRE}")
    A(f"s_lshl_b32 s{sBw}, s{sW}, 13")
    A(f"s_add_u32 s{sBw}, s{sBw}, {AUX}")
    A(f"s_lshl_b32 s{sKoff}, s{sW}, 13")
    A(f"s_mov_b32 s{sVoff}, s{sKoff}")
    A(f"s_and_b32 s{sT2}, s2, 7")
    A(f"s_lshr_b32 s{sT3}, s2, 3")
    A(f"s_lshl_b32 s{sWqOff}, s{sT2}, 10")
    A(f"s_lshl_b32 s{sT0}, s{sW}, 7")
    A(f"s_add_u32 s{sWqOff}, s{sWqOff}, s{sT0}")
    A(f"s_mul_i32 s{sXoff}, s{sT3}, 36864")
    A(f"s_add_u32 s{sTail}, s{sXoff}, 1024")
    A(f"s_lshl_b32 s{sT0}, s{sW}, 8")
    A(f"s_add_u32 s{sXoff}, s{sXoff}, s{sT0}")
    A(f"s_mul_i32 s{sWoOff}, s{sT2}, {512*1152}")
    A(f"s_mul_i32 s{sT1}, s{sW}, {64*1152}")
    A(f"s_add_u32 s{sWxOff}, s{sWoOff}, s{sT1}")
    A(f"s_add_u32 s{sWxOff}, s{sWxOff}, 1024")
    A(f"s_add_u32 s{sWoOff}, s{sWoOff}, s{sT0}")
    A("s_lshl_b32 s72, s2, 20")
    A("s_lshr_b32 s73, s2, 12")
    A("s_mul_i32 s74, s2, 73728")
    A(f"s_lshl_b32 s{sT1}, s{sT3}, 2")
    A(f"s_add_u32 s{sT1}, s{sT1}, s{sW}")
    A(f"s_mul_i32 s{sT1}, s{sT1}, 36")
    A(f"v_add_u32 v40, s{sT1}, v31")
    A(f"s_lshl_b32 s{sT1}, s{sT2}, 10")
    A("v_lshrrev_b32 v41, 3, v40")
    A("v_and_b32 v42, 7, v40")
    A("v_lshlrev_b32 v42, 7, v42")
    A("v_lshl_add_u32 v41, v41, 13, v42")
    A(f"v_add_u32 v41, s{sT1}, v41")
    A(f"s_mul_i32 s{sT1}, s{sT2}, 589824")
    A("v_lshlrev_b32 v40, 7, v40")
    A(f"v_add_u32 v40, s{sT1}, v40")
    A("v_cmp_gt_u32 vcc, 36, v31")
    A("v_mov_b32 v42, 0x7f000000")
    A("s_nop 0")
    R1=sT2; R2=sT3
    A(f"v_cndmask_b32 v{vX0}, v42, v41, vcc")
    A(f"v_cndmask_b32 v{vX1}, v42, v40, vcc")
    A(f"s_add_u32 s{R1}, s{sRB}, 8192")
    A(f"s_add_u32 s{R2}, s{sRB}, 16384")
    def mk(s, lo, hi, size=0, add=None):
        if add:
            A(f"s_add_u32 s{s}, s{lo}, s{add[0]}")
            A(f"s_addc_u32 s{s+1}, s{hi}, {add[1]}")
        else:
            A(f"s_mov_b32 s{s}, s{lo}"); A(f"s_mov_b32 s{s+1}, s{hi}")
    for s,size in ((sWQ,576*8192),(sX,32*36864),(sK,1<<20),(sV,1<<20),(sWO,4096*1152),(sWS,73728)):
        A(f"s_mov_b32 s{s+2}, {size}"); A(f"s_mov_b32 s{s+3}, 0x20000")
    A("s_waitcnt lgkmcnt(0)")
    mk(sX,60,61); mk(sK,62,63,0,(72,"s73")); mk(sWQ,66,67)
    stamp(0); cyc(2)
    A(f"buffer_load_dword v{vD0}, v{vX0}, {srd(sWQ)}, 0 offen")
    emit(I_unit(sX,[44,45,46,47],sBw,sXoff,4*1152,0))
    emit(I_unit(sX,vWxd,sSS,sTail,8*1152,0,4))
    emit(I_kv('K', sRB, sKoff))
    emit(I_wq(R1)); emit(I_wq(R2))
    mk(sV,64,65,0,(72,"s73")); mk(sWO,68,69); mk(sWS,70,71,0,(74,"0"))
    A(f"v_lshlrev_b32 v{vL16}, 4, v31")
    A(f"v_lshlrev_b32 v{vL8}, 3, v31")
    A("v_lshlrev_b32 v35, 2, v33")
    A("v_xor_b32 v35, v34, v35")
    A("v_lshlrev_b32 v35, 4, v35")
    A(f"v_lshl_add_u32 v{vVd}, v33, 8, v35")
    A(f"v_add_u32 v{vWod}, v36, v35")
    A("v_and_b32 v36, 31, v31")
    A("v_lshrrev_b32 v37, 5, v31")
    A("v_and_b32 v39, 15, v36")
    A("v_xor_b32 v39, v39, v37")
    A("v_lshlrev_b32 v39, 4, v39")
    A(f"v_lshl_add_u32 v{vXr}, v36, 8, v39")
    A(f"v_add_u32 v{vXr}, {AUX}, v{vXr}")
    A("v_and_b32 v39, 2, v36")
    A("v_lshl_or_b32 v39, v39, 1, v37")
    A("v_lshlrev_b32 v39, 4, v39")
    A("v_lshl_add_u32 v43, v36, 7, v39")
    A(f"v_add_u32 v43, s{sSS}, v43")
    A("v_and_b32 v38, 0x13, v36")
    A("v_and_b32 v39, 4, v36")
    A("v_lshl_or_b32 v38, v39, 1, v38")
    A("v_and_b32 v39, 8, v36")
    A("v_lshrrev_b32 v39, 1, v39")
    A("v_or_b32 v38, v38, v39")
    A("v_and_b32 v39, 15, v38")
    A("v_xor_b32 v39, v39, v37")
    A("v_lshlrev_b32 v39, 4, v39")
    A(f"v_lshl_add_u32 v{vKr}, v38, 8, v39")
    A("v_bfe_u32 v38, v31, 2, 2")
    A("v_lshl_add_u32 v39, v37, 3, v38")
    A("v_and_b32 v40, 1, v33")
    A("v_lshlrev_b32 v40, 5, v40")
    A("v_and_b32 v41, 1, v31")
    A("v_lshl_or_b32 v40, v41, 4, v40")
    A("v_and_b32 v41, 2, v31")
    A("v_lshl_or_b32 v40, v41, 2, v40")
    A(f"v_xor_b32 v41, s{sW}, v38")
    A("v_lshl_or_b32 v41, v41, 6, v40")
    A(f"v_lshl_add_u32 v{vVr}, v39, 8, v41")
    A("v_lshrrev_b32 v41, 1, v38")
    A("v_lshl_or_b32 v41, v41, 6, v40")
    A(f"v_lshl_add_u32 v{vWr}, v39, 7, v41")
    A(f"s_lshl_b32 s{sT0}, s{sW}, 5")
    A(f"v_xor_b32 v{vWrX}, s{sT0}, v{vWr}")
    A(f"s_xor_b32 s{sSSp}, s{sSS}, 32768")
    A(f"s_xor_b32 s{sBp}, s{sBw}, 8192")
    A(f"s_mov_b32 s{sC}, 0x{f2u(SCALE):08x}")
    A(f"s_mov_b32 s{sThr}, 0x{f2u(float(opt.thr)):08x}")
    A(f"s_mov_b32 s{sMConsW}, 0x000101ff")
    A(f"s_mov_b32 s{sMXrd}, 0x000001fe")
    A(f"s_mov_b32 s{sMIssWq}, 0x000000ff")
    A(f"s_mov_b32 s{sMIssVo}, 0x00ff0000")
    A(f"s_mov_b32 s{sMSide}, 0x01ff01ff")
    A(f"s_mov_b32 s{sMSpec}, 0x{(1<<9)|(1<<10)|(1<<14)|(1<<25)|(1<<30):08x}")
    A(f"s_mov_b32 s{sFree}, s{R2}")
    A(f"s_mov_b32 s{sP}, 0")
    A(f"s_mov_b32 s{sT}, 0")
    A(f"s_mov_b32 s{sSlot}, s{sRB}")
    A(f"v_mov_b32 v{vMs[0]}, 0"); A(f"v_mov_b32 v{vMs[1]}, 0")
    for u in range(1,4): A(f"v_xor_b32 v{43 - u}, {32*u}, v43")
    A("s_waitcnt vmcnt(24)")
    stamp(40,23)
    for u in range(4): A(f"ds_read_b128 {ar(aXF+4*u,4)}, v{43-u}")
    A("s_waitcnt lgkmcnt(0)")
    emit(I_wq(sSS))
    A("s_barrier")
    A("s_waitcnt vmcnt(24)")
    emit(I_rdK(sRB, aKF))
    A("s_waitcnt lgkmcnt(0)")
    emit(I_kv('K', sRB, sKoff))
    slots=[R1,R2,sSS]
    def piece(p, n, nxt):
        A(f"s_waitcnt vmcnt({n})")
        stamp(41+p,23)
        emit(I_rdW(slots[p%3], vWr, aPm))
        if p<8:
            for u in range(4):
                A(f"v_xor_b32 v{vT+2+u}, {128*(p&1)+32*u}, v{vXr}")
                A(f"ds_read_b128 {vr(vX[0]+4*u,4)}, v{vT+2+u} offset:{(p>>1)*8192}")
            xf=lambda u: vr(vX[0]+4*u,4)
        else: xf=lambda u: ar(aXF+4*u,4)
        A("s_waitcnt lgkmcnt(0)")
        emit(weave(I_mmW(aPm, xf, first=(p==0)), nxt) if nxt else I_mmW(aPm, xf))
    for p in range(3): piece(p, 24, I_wq(slots[p]))
    A("s_waitcnt vmcnt(24)")
    emit(I_rdK(sRB, aVF))
    A("s_waitcnt lgkmcnt(0)")
    emit(I_kv('V', sRB, sVoff))
    for p in range(3,6): piece(p, 24, I_wq(slots[p%3]))
    piece(6, 16, I_kv('K', R1, sKoff))
    piece(7, 16, [])
    piece(8, 8, [])
    A(f"buffer_load_dword v{vD0}, v{vX1}, {srd(sWO)}, 0 offen")
    A(f"s_sub_u32 s{sWqOff}, s{sWqOff}, {64*8192-512}")
    A(f"v_add_u32 v{vT}, s{sSS}, v{vL16}")
    A(f"v_add_u32 v{vT+1}, 24576, v{vL16}")
    A(f"v_add_u32 v{vT+2}, {24576+65536}, v{vL16}")
    A("s_nop 7")
    emit(I_qfrags(vY[0]))
    for f in range(4): A(f"ds_write_b128 v{vT}, {vr(vY[0]+4*f,4)} offset:{f*1024}")
    for i in range(32): A(f"v_accvgpr_write_b32 a{aPx+i}, 0")
    A("s_waitcnt lgkmcnt(0)")
    A("s_barrier")
    for f in range(16): A(f"ds_read_b128 {ar(aQ+4*f,4)}, v{vT+1+(f>>3)} offset:{((f>>2)&1)*32768+(f&3)*1024}")
    A("s_waitcnt lgkmcnt(0)")
    stamp(1)
    qk=I_qk()
    emit(qk[:12])
    emit(weave(qk[12:], ["s_nop 7"]+I_fma(0)))
    A("s_barrier")
    emit(I_wq(sSS))
    A(f"s_sub_u32 s{sWqOff}, s{sWqOff}, {576*8192}")
    for i in range(32): A(f"v_accvgpr_mov_b32 a{aKF+i}, a{aVF+i}")
    emit(I_fma(1))
    A(f"s_mov_b32 s{sFirst}, 1")
    A("s_branch L_rare")
    ex, ex_tail = I_expsum()
    qk=I_qk()
    L.append(".p2align 6")
    LBL("L_loop")
    A("s_waitcnt lgkmcnt(0)")
    fine(0)
    emit(weave(qk, merge_even(I_kvt('V', sFree, sVoff), ex)))
    emit(ex_tail)
    fine(1)
    emit(I_wait_side())
    stamp(0,23,True)
    fine(2)
    emit(I_rdV(sSlot, aVF))
    emit(I_fma(0))
    pv=I_pv()
    f1=I_fma(1)
    for k in range(4):
        if k%2==0: A(f"s_waitcnt lgkmcnt({14-k})")
        A(pv[k]); emit(f1[4*k:4*k+4])
    A("s_waitcnt lgkmcnt(0)")
    fine(3)
    mx=[]
    allY=[vY[0]+i for i in range(16)]+[vY[1]+i for i in range(16)]
    mx.append(f"v_max3_f32 v{vX0}, v{allY[0]}, v{allY[1]}, v{allY[2]}")
    mx.append(f"v_max3_f32 v{vX1}, v{allY[16]}, v{allY[17]}, v{allY[18]}")
    for i in range(6):
        mx.append(f"v_max3_f32 v{vX0}, v{vX0}, v{allY[3+2*i]}, v{allY[4+2*i]}")
        mx.append(f"v_max3_f32 v{vX1}, v{vX1}, v{allY[19+2*i]}, v{allY[20+2*i]}")
    mx.append(f"v_max3_f32 v{vX0}, v{vX0}, v{allY[15]}, v{allY[31]}")
    mx.append(f"v_max_f32 v{vX0}, v{vX0}, v{vX1}")
    mx.append(f"v_cmp_lt_f32 vcc, s{sThr}, v{vX0}")
    rest = [f"s_mov_b32 s{sT2}, s{sSlot}"] + I_adv() + mx[:14] + I_wait_side() + [f"s_mov_b32 s{sFree}, s{sSlot}"] + I_rdK(sSlot, aKF) + I_adv() + mx[14:]
    fill = fix_ws(rest[:1] + merge_even(I_kvt('K', sT2, sKoff), rest[1:]), 8)
    emit(weave(pv[4:], fill))
    fine(4)
    stamp(8,0,True)
    A(f"s_and_b32 s{sT1}, s{sT}, 15")
    A(f"s_cmp_eq_u32 s{sT1}, 15")
    A("s_cbranch_scc1 L_combine")
    A("s_cbranch_vccnz L_rare")
    LBL("L_rare_ret")
    A(f"s_bitcmp1_b32 s{sMSide}, s{sT}")
    A("s_cbranch_scc0 L_noside")
    A("s_waitcnt vmcnt(16)")
    fine(5)
    A(f"s_bitcmp1_b32 s{sMConsW}, s{sT}")
    A("s_cbranch_scc0 L_consV")
    emit(I_rdW(sSS, vWr, aVF))
    A(f"s_bitcmp1_b32 s{sMXrd}, s{sT}")
    A("s_cbranch_scc0 L_noxrd")
    A(f"s_and_b32 s{sT0}, s{sP}, 1"); A(f"s_lshl_b32 s{sT0}, s{sT0}, 7")
    A(f"s_lshr_b32 s{sT1}, s{sP}, 1"); A(f"s_lshl_b32 s{sT1}, s{sT1}, 13")
    A(f"v_xor_b32 v{vT+2}, s{sT0}, v{vXr}")
    A(f"v_add_u32 v{vT+2}, s{sT1}, v{vT+2}")
    A(f"s_add_u32 s{sP}, s{sP}, 1")
    A(f"ds_read_b128 {ar(aXF,4)}, v{vT+2}")
    for u in range(1,4):
        A(f"v_xor_b32 v{vT+2+u}, {32*u}, v{vT+2}")
        A(f"ds_read_b128 {ar(aXF+4*u,4)}, v{vT+2+u}")
    LBL("L_noxrd")
    A("s_waitcnt lgkmcnt(0)")
    emit(I_mmW(aVF, lambda u: ar(aXF+4*u,4)))
    A("s_branch L_issue")
    LBL("L_consV")
    emit(I_rdV(sSS, aVF))
    emit(I_rdOF(sP))
    A(f"s_add_u32 s{sP}, s{sP}, 1")
    A("s_waitcnt lgkmcnt(0)")
    emit(I_mmO(aVF))
    LBL("L_issue")
    fine(6)
    A(f"s_bitcmp1_b32 s{sMIssWq}, s{sT}")
    A("s_cbranch_scc0 L_issVo")
    emit(I_wq(sSS))
    A("s_branch L_noside")
    LBL("L_issVo")
    A(f"s_bitcmp1_b32 s{sMIssVo}, s{sT}")
    A("s_cbranch_scc0 L_noside")
    emit(I_wo(sSS))
    LBL("L_noside")
    fine(7)
    A(f"s_bitcmp1_b32 s{sMSpec}, s{sT}")
    A("s_cbranch_scc1 L_special")
    LBL("L_spec_ret")
    A(f"s_add_u32 s{sT}, s{sT}, 1")
    A("s_branch L_loop")
    LBL("L_special")
    A(f"s_and_b32 s{sT1}, s{sT}, 15")
    A(f"s_cmp_eq_u32 s{sT1}, 14")
    A("s_cbranch_scc1 L_sp14")
    A("s_waitcnt lgkmcnt(0)")
    A("s_barrier")
    A(f"s_cmp_lg_u32 s{sT}, 9")
    A("s_cbranch_scc1 L_spec_ret")
    emit(I_qfrags(vX[0]))
    A(f"v_add_u32 v{vT}, s{sBw}, v{vL16}")
    for f in range(4): A(f"ds_write_b128 v{vT}, {vr(vX[0]+4*f,4)} offset:{f*1024}")
    A("s_branch L_spec_ret")
    LBL("L_sp14")
    for qt in range(2):
        A(f"v_mov_b32 v{vMf[qt]}, v{vMs[qt]}"); A(f"v_mov_b32 v{vMs[qt]}, 0")
    A(f"s_cmp_lg_u32 s{sT}, 14")
    A("s_cbranch_scc1 L_spec_ret")
    A(f"v_add_u32 v{vT}, {AUX}, v{vL16}")
    for f in range(16): A(f"ds_read_b128 {ar(aQ+4*f,4)}, v{vT} offset:{(f>>2)*8192+(f&3)*1024}")
    A("s_waitcnt lgkmcnt(0)")
    A("s_barrier")
    A("s_branch L_spec_ret")
    LBL("L_rare")
    for qt,d in ((0,vX0),(1,vX1)): A(f"v_max3_f32 v{d}, v{vY[qt]}, v{vY[qt]+1}, v{vY[qt]+2}")
    for i in range(6):
        for qt,d in ((0,vX0),(1,vX1)): A(f"v_max3_f32 v{d}, v{d}, v{vY[qt]+3+2*i}, v{vY[qt]+4+2*i}")
    for qt,d in ((0,vX0),(1,vX1)): A(f"v_max_f32 v{d}, v{d}, v{vY[qt]+15}")
    A("s_nop 1")
    A(f"v_permlane32_swap_b32 v{vX0}, v{vX1}")
    A(f"v_max_f32 v{vX0}, v{vX0}, v{vX1}")
    A(f"s_cmp_lg_u32 s{sFirst}, 0")
    A("s_cbranch_scc1 L_r1")
    A(f"v_max_f32 v{vX0}, 0, v{vX0}")
    LBL("L_r1")
    A(f"v_mov_b32 v{vX1}, v{vX0}")
    A("s_nop 1")
    A(f"v_permlane32_swap_b32 v{vX0}, v{vX1}")
    for qt,d in ((0,vX0),(1,vX1)): A(f"v_add_f32 v{vMs[qt]}, v{vMs[qt]}, v{d}")
    for i in range(16):
        for qt,d in ((0,vX0),(1,vX1)): A(f"v_sub_f32 v{vY[qt]+i}, v{vY[qt]+i}, v{d}")
    A("s_cbranch_scc1 L_r2")
    for qt,d in ((0,vX0),(1,vX1)): A(f"v_exp_f32 v{vAl[qt]}, -v{d}")
    A("s_nop 0")
    for qt in range(2): A(f"v_pk_mul_f32 {vr(vLs[qt],2)}, {vr(vLs[qt],2)}, {vr(vAl[qt],2)} op_sel_hi:[1,0]")
    for t in range(4):
        for qt in range(2):
            for i in range(0,16,2):
                o=Oreg(t,qt)+i
                A(f"v_pk_mul_f32 {vr(o,2)}, {vr(o,2)}, {vr(vAl[qt],2)} op_sel_hi:[1,0]")
    A("s_branch L_rare_ret")
    LBL("L_r2")
    for i in range(0,128,2): A(f"v_pk_mov_b32 {vr(vO+i,2)}, 0, 0")
    for qt in range(2): A(f"v_pk_mov_b32 {vr(vLs[qt],2)}, 0, 0")
    A(f"s_mov_b32 s{sFirst}, 0")
    A("s_branch L_loop")
    LBL("L_combine")
    A(f"s_add_u32 s{sT}, s{sT}, 1")
    stamp(24,0,True)
    A(f"s_cmp_eq_u32 s{sT}, 32")
    A("s_cbranch_scc0 L_c1")
    A("s_waitcnt vmcnt(0)")
    emit(I_wx(sSlot)); emit(I_adv())
    emit(I_wo(sSlot)); emit(I_adv())
    LBL("L_c1")
    E=vT
    A(f"v_add_f32 v{vLs[0]}, v{vLs[0]}, v{vLs[0]+1}")
    A(f"v_add_f32 v{vLs[1]}, v{vLs[1]}, v{vLs[1]+1}")
    A(f"v_add_u32 v{E}, s{sSS}, v{vL16}")
    A(f"v_add_u32 v{E+1}, s{sBw}, v{vL16}")
    A(f"v_permlane32_swap_b32 v{vMf[0]}, v{vMf[1]}")
    A(f"v_permlane32_swap_b32 v{vLs[0]}, v{vLs[1]}")
    A(f"v_add_u32 v{E+2}, s{sFree}, v{vL8}")
    A(f"v_mov_b32 v{vD0}, v{vMf[0]}")
    A(f"v_add_f32 v{vD1}, v{vLs[0]}, v{vLs[1]}")
    A(f"v_add_u32 v{E+3}, s{sSSp}, v{vL16}")
    A(f"v_add_u32 v{E+4}, s{sBp}, v{vL16}")
    A(f"v_xor_b32 v{E+5}, 32768, v{E+2}")
    A("s_waitcnt lgkmcnt(0)")
    A(f"ds_write_b64 v{E+2}, {vr(vD0,2)}")
    for i in range(8): A(f"ds_write_b128 v{E+1}, {vr(Oreg(3,0)+4*i,4)} offset:{i*1024}")
    for i in range(8): A(f"ds_write_b128 v{E}, {vr(Oreg(1,0)+4*i,4)} offset:{i*1024}")
    A(f"v_add_u32 v{E+6}, s{sBp}, v{vL8}")
    A(f"v_xor_b32 v{E+7}, 65536, v{E+3}")
    A(f"v_xor_b32 v{E+8}, 16384, v{E+6}")
    A("s_waitcnt lgkmcnt(0)")
    A("s_barrier")
    cyc(4) if False else None
    A(f"ds_read_b64 {vr(vMf[0],2)}, v{E+5}")
    for i in range(8): A(f"ds_read_b128 {vr(Oreg(3,0)+4*i,4)}, v{E+4} offset:{i*1024}")
    for i in range(6): A(f"ds_read_b128 {vr(Oreg(1,0)+4*i,4)}, v{E+3} offset:{i*1024}")
    A("s_waitcnt lgkmcnt(14)")
    for i in range(6,8): A(f"ds_read_b128 {vr(Oreg(1,0)+4*i,4)}, v{E+3} offset:{i*1024}")
    def factors(final):
        A(f"v_max_f32 v{vX0}, v{vD0}, v{vMf[0]}")
        A(f"v_sub_f32 v{vD0}, v{vD0}, v{vX0}")
        A(f"v_sub_f32 v{vMf[0]}, v{vMf[0]}, v{vX0}")
        A(f"v_exp_f32 v{vAl[0]}, v{vD0}")
        A(f"v_exp_f32 v{vLs[0]}, v{vMf[0]}")
        A(f"v_mov_b32 v{vD0}, v{vX0}")
        A(f"v_mul_f32 v{vD1}, v{vD1}, v{vAl[0]}")
        A(f"v_fmac_f32 v{vD1}, v{vMf[1]}, v{vLs[0]}")
        if final:
            A(f"v_rcp_f32 v{vX1}, v{vD1}")
            A("s_nop 0")
            A(f"v_mul_f32 v{vAl[0]}, v{vAl[0]}, v{vX1}")
            A(f"v_mul_f32 v{vLs[0]}, v{vLs[0]}, v{vX1}")
        A(f"v_mov_b32 v{vAl[1]}, v{vAl[0]}")
        A(f"v_mov_b32 v{vLs[1]}, v{vLs[0]}")
        A("s_nop 1")
        A(f"v_permlane32_swap_b32 v{vAl[0]}, v{vAl[1]}")
        A(f"v_permlane32_swap_b32 v{vLs[0]}, v{vLs[1]}")
    def scale_own(t):
        for qt in range(2):
            for i in range(0,16,2):
                o=Oreg(t,qt)+i
                A(f"v_pk_mul_f32 {vr(o,2)}, {vr(o,2)}, {vr(vAl[qt],2)} op_sel_hi:[1,0]")
    def add_rcv(t, rt):
        for qt in range(2):
            for i in range(0,16,2):
                o=Oreg(t,qt)+i; r=Oreg(rt,qt)+i
                A(f"v_pk_fma_f32 {vr(o,2)}, {vr(r,2)}, {vr(vLs[qt],2)}, {vr(o,2)} op_sel_hi:[1,0,1]")
    factors(False)
    scale_own(2)
    A("s_waitcnt lgkmcnt(8)")
    add_rcv(2,3)
    A("s_waitcnt lgkmcnt(0)")
    for i in range(8): A(f"ds_write_b128 v{E+3}, {vr(Oreg(2,0)+4*i,4)} offset:{i*1024}")
    A(f"ds_write_b64 v{E+6}, {vr(vD0,2)} offset:4096")
    scale_own(0)
    add_rcv(0,1)
    A("s_waitcnt lgkmcnt(0)")
    A("s_barrier")
    A(f"ds_read_b64 {vr(vMf[0],2)}, v{E+8} offset:4096")
    for i in range(8): A(f"ds_read_b128 {vr(Oreg(1,0)+4*i,4)}, v{E+7} offset:{i*1024}")
    A("s_waitcnt lgkmcnt(8)")
    factors(True)
    scale_own(0)
    A("s_waitcnt lgkmcnt(0)")
    add_rcv(0,1)
    for i in range(16): A(f"v_cvt_pk_bf16_f32 v{Oreg(1,0)+i}, v{Oreg(0,0)+2*i}, v{Oreg(0,0)+2*i+1}")
    for f in range(4): A(f"ds_write_b128 v{E+4}, {vr(Oreg(1,0)+4*f,4)} offset:{f*1024}")
    A(f"s_mov_b32 s{sP}, 0")
    A("s_waitcnt lgkmcnt(0)")
    A("s_barrier")
    stamp(25,0,True)
    emit(I_rdXFx())
    A(f"s_cmp_eq_u32 s{sT}, 32")
    A("s_cbranch_scc1 L_tail")
    emit(I_wx(sSS))
    A(f"v_mov_b32 v{vWr}, v{vWrX}")
    for i in range(96): A(f"v_accvgpr_write_b32 a{aPm+i}, 0")
    A(f"s_mov_b32 s{sFirst}, 2")
    A("s_waitcnt lgkmcnt(0)")
    A("s_branch L_rare")
    LBL("L_tail")
    emit(I_wo(sFree))
    emit(I_wo(sSS))
    order=[]
    emit(I_adv())
    A(f"s_mov_b32 s{sT2}, s{sSlot}")
    emit(I_adv())
    A(f"s_mov_b32 s{sT3}, s{sSlot}")
    ring=[sT3, sFree, sSS, sT2]
    A("s_waitcnt vmcnt(24)")
    emit(I_rdW(sT2, vWr, aKF))
    A("s_waitcnt lgkmcnt(0)")
    emit(weave(I_mmW(aKF, lambda u: ar(aXF+4*u,4)), I_wo(sT2)))
    A(f"v_add_u32 v{vT+4}, {AUX}, v{vL16}")
    for p in range(8):
        A(f"s_waitcnt vmcnt({min(3,7-p)*8})")
        src = aVF if p%2==0 else aKF
        emit(I_rdV(ring[p%4], src))
        off=((p&3)^1)*8192+(p>>2)*2048
        xf = aXF+8*(p&1)
        A(f"ds_read_b128 {ar(xf,4)}, v{vT+4} offset:{off}")
        A(f"ds_read_b128 {ar(xf+4,4)}, v{vT+4} offset:{off+1024}")
        A("s_waitcnt lgkmcnt(0)")
        mm=[f"{MFMA} {ar(aPm+16*t,16)}, {ar(src+8*t+4*u,4)}, {ar(xf+4*u,4)}, {ar(aPm+16*t,16)}" for u in range(2) for t in range(4)]
        emit(weave(mm, I_wo(ring[p%4])) if p<4 else mm)
    stamp(60)
    A(f"v_add_u32 v{vT}, s{sRB}, v{vL16}")
    for i in range(2,8): A(f"ds_write_b128 v{vT}, {ar(aPx+4*i,4)} offset:{i*1024}")
    for i in range(8): A(f"v_accvgpr_read_b32 v{vX[0]+i}, a{aPx+i}")
    for b in range(1,4): A(f"v_xor_b32 v{vT+b}, {b*32768}, v{vT}")
    A(f"s_mul_i32 s{sT1}, s{sW}, 18432")
    A("s_waitcnt lgkmcnt(0)")
    A("s_barrier")
    for b in range(1,4):
        for j in range(2): A(f"ds_read_b128 {vr(vY[0]+8*b+4*j,4)}, v{vT+b} offset:{(2*b+j)*1024}")
    for i in range(16):
        if i%4==0: A(f"s_add_u32 s{sT0}, s{sT1}, {i*1024}")
        A(f"buffer_store_dwordx4 {ar(aPm+4*i,4)}, v{vL16}, {srd(sWS)}, s{sT0} offen offset:{(i&3)*1024} {opt.part_flags}")
    A(f"s_add_u32 s{sT0}, s{sT1}, {16*1024}")
    A("s_waitcnt lgkmcnt(0)")
    for b in range(1,4):
        for i in range(0,8,2): A(f"v_pk_add_f32 {vr(vX[0]+i,2)}, {vr(vX[0]+i,2)}, {vr(vY[0]+8*b+i,2)}")
    for j in range(2):
        A(f"buffer_store_dwordx4 {vr(vX[0]+4*j,4)}, v{vL16}, {srd(sWS)}, s{sT0} offen offset:{j*1024} {opt.part_flags}")
    if opt.stamps:
        stamp(61); A("s_waitcnt vmcnt(0)"); stamp(62); cyc(3); stamp_out()
    LBL("L_done")
    A("s_endpgm")

def reduce_kernel(name):
    L.append(f".globl {name}\n.p2align 8\n.type {name},@function")
    LBL(name)
    A("s_cmp_ge_u32 s2, 1152")
    A("s_cbranch_scc1 L_rdone")
    A("s_load_dwordx2 s[4:5], s[0:1], 56")
    A("s_load_dwordx2 s[6:7], s[0:1], 40")
    A("s_mul_hi_u32 s8, s2, 0x1c71c71d")
    A("s_mul_i32 s9, s8, 9")
    A("s_sub_u32 s9, s2, s9")
    A("s_and_b32 s10, s8, 3")
    A("s_lshr_b32 s11, s8, 2")
    A(f"s_mul_i32 s12, s11, {8*73728}")
    A("s_mul_i32 s13, s10, 18432")
    A("s_add_u32 s12, s12, s13")
    A("s_lshl_b32 s13, s9, 11")
    A("s_add_u32 s12, s12, s13")
    A("v_lshlrev_b32 v1, 4, v0")
    A("s_lshr_b32 s13, s9, 1")
    A("s_xor_b32 s13, s13, s10")
    A("s_lshl_b32 s13, s13, 5")
    A("s_lshl_b32 s14, s10, 7")
    A("s_add_u32 s13, s13, s14")
    A("s_and_b32 s14, s9, 1")
    A("s_lshl_b32 s14, s14, 4")
    A("s_add_u32 s13, s13, s14")
    A("s_lshl_b32 s14, s10, 4")
    A("s_add_u32 s14, s14, 512")
    A("s_cmp_eq_u32 s9, 8")
    A("s_cselect_b32 s13, s14, s13")
    A("s_lshl_b32 s13, s13, 1")
    A("s_mul_i32 s14, s11, 36864")
    A("s_add_u32 s13, s13, s14")
    A("v_and_b32 v2, 31, v0")
    A("v_mul_u32_u24 v2, 1152, v2")
    A("v_lshrrev_b32 v3, 5, v0")
    A("v_lshl_add_u32 v2, v3, 4, v2")
    A(f"s_mov_b32 s18, {256*73728}"); A("s_mov_b32 s19, 0x20000")
    A(f"s_mov_b32 s22, {1024*1152}"); A("s_mov_b32 s23, 0x20000")
    A("s_waitcnt lgkmcnt(0)")
    A("s_mov_b32 s16, s4"); A("s_mov_b32 s17, s5")
    A("s_mov_b32 s20, s6"); A("s_mov_b32 s21, s7")
    for hp in range(8):
        A(f"buffer_load_dwordx4 {vr(8+8*hp,4)}, v1, s[16:19], s12 offen {opt.red_flags}")
        A(f"buffer_load_dwordx4 {vr(12+8*hp,4)}, v1, s[16:19], s12 offen offset:1024 {opt.red_flags}")
        if hp<7: A("s_add_u32 s12, s12, 73728")
    for hp in range(1,8):
        A(f"s_waitcnt vmcnt({14-2*hp})")
        for i in range(0,8,2): A(f"v_pk_add_f32 {vr(8+i,2)}, {vr(8+i,2)}, {vr(8+8*hp+i,2)}")
    for i in range(4): A(f"v_cvt_pk_bf16_f32 v{4+i}, v{8+2*i}, v{9+2*i}")
    A("buffer_store_dwordx4 v[4:7], v2, s[20:23], s13 offen")
    LBL("L_rdone")
    A("s_endpgm")

def desc(name, vgpr, acc, sgpr):
    return f""".p2align 6
.amdhsa_kernel {name}
  .amdhsa_next_free_vgpr {vgpr}
  .amdhsa_next_free_sgpr {sgpr}
  .amdhsa_accum_offset {acc}
  .amdhsa_group_segment_fixed_size 0
  .amdhsa_kernarg_size 64
  .amdhsa_user_sgpr_count 2
  .amdhsa_user_sgpr_kernarg_segment_ptr 1
  .amdhsa_system_sgpr_workgroup_id_x 1
  .amdhsa_float_denorm_mode_32 3
  .amdhsa_float_denorm_mode_16_64 3
.end_amdhsa_kernel"""

HEADER = open('standalone__gqa_block_cached__sampling.s.ref').read().split('; Override launch')[0]
def build(path):
    L.clear(); uid[0]=0
    K1="standalone__gqa_block_cached__sampling_kernel"; K2="gqa_reduce_kernel"
    main_kernel(K1)
    reduce_kernel(K2)
    out = HEADER + f"; @launch kernel={K1} grid=(256,1,1) block=(256,1,1) lds=163840\n"
    out += f"; @launch kernel={K2} grid=(1152,1,1) block=(64,1,1) lds=0\n"
    out += '.amdgcn_target "amdgcn-amd-amdhsa--gfx950"\n.text\n' + "\n".join(L) + "\n"
    out += '.section .rodata,"a"\n' + desc(K1,512,256,96) + "\n" + desc(K2,72,72,32) + "\n"
    open(path,'w').write(out)

if __name__=='__main__':
    path = sys.argv[1]
    for a in sys.argv[2:]:
        k,v = a.split('=',1); setattr(opt,k,v)
    build(path)
```

```python
import sys, math, struct

class Opt:
    kv_flags = "nt"
    part_flags = ""
    red_flags = ""
    stamps = None
    fine = None
    thr = 8.0
    N = 6
    dbgout = None
opt = Opt()

L = []
def A(s): L.append("    " + s)
def LBL(s): L.append(s + ":")
def f2u(x): return struct.unpack('<I', struct.pack('<f', x))[0]
SCALE = math.log2(math.e) / math.sqrt(128.0)

sK, sV, sWQ, sWO, sX, sWS = 4, 8, 12, 16, 20, 24
def srd(b): return f"s[{b}:{b+3}]"
sW=28; sT=29; sSlot=30; sRB=31; sRE=32; sKoff=33; sVoff=34; sT0=35; sT1=36; sC=37; sSS=38
sWqOff=39; sXoff=40; sWoOff=41; sMConsW=42; sMXrd=43; sMIssWq=44; sMIssVo=45; sMSide=46; sP=47
sFree=48; sBw=49; sBp=50; sSSp=51; sT2=52; sT3=53; sWxOff=54; sMSpec=55; sTail=56; sFirst=57; sThr=58
vL16=1; vKd=[2,3,4,5]; vVd=6; vWqd=7; vWod=8; vWxd=9; vXr=10; vKr=11; vVr=12; vWr=13; vWrX=14
vMs=[15,16]; vL8=17
vLs=[18,20]
vAl=[22,24]
vMf=[26,27]
vX0=28; vX1=29; vD0=30; vD1=31
vT=32
vX=[48,64]
vY=[80,96]
vP=[112,120]
vO=128
def Oreg(t,qt): return vO+32*t+16*qt
aQ=0; aKF=64; aVF=96; aPm=128; aPx=192; aXF=224
def vr(b,n): return f"v[{b}:{b+n-1}]"
def ar(b,n): return f"a[{b}:{b+n-1}]"
AUX=131072
MFMA="v_mfma_f32_32x32x16_bf16"
uid=[0]
def newlbl(p):
    uid[0]+=1; return f"L_{p}_{uid[0]}"

def stamp(idx, reg=0, plusT=False):
    if not opt.stamps: return
    A("s_memrealtime s[84:85]")
    if plusT: A(f"s_add_u32 m0, s{sT}, {idx}")
    else: A(f"s_mov_b32 m0, {idx}")
    A("s_waitcnt lgkmcnt(0)")
    A(f"v_writelane_b32 v{reg}, s84, m0")
def cyc(idx, reg=0):
    if not opt.stamps: return
    A("s_memtime s[84:85]"); A(f"s_mov_b32 m0, {idx}"); A("s_waitcnt lgkmcnt(0)"); A(f"v_writelane_b32 v{reg}, s84, m0")
def fine(idx):
    if not opt.fine: return
    l=newlbl("f")
    A(f"s_cmp_lg_u32 s{sT}, {opt.fine}")
    A(f"s_cbranch_scc1 {l}")
    cyc(idx, 25)
    LBL(l)
def stamp_out():
    if opt.dbgout:
        l=newlbl("dbg"); l2=newlbl("dbg")
        A("s_load_dwordx2 s[76:77], s[0:1], 48"); A("s_mov_b32 s78, 256"); A("s_mov_b32 s79, 0x20000")
        A(f"s_cmp_lg_u32 s{sW}, 0"); A(f"s_cbranch_scc1 {l}")
        A("s_waitcnt lgkmcnt(0)")
        A("s_getreg_b32 s80, hwreg(HW_REG_XCC_ID)"); A("s_add_u32 s80, s80, 100")
        A("s_lshr_b32 s81, s2, 3"); A("s_lshl_b32 s81, s81, 1"); A("s_and_b32 s82, s2, 7"); A("s_add_u32 s81, s81, s82")
        A("s_cmp_gt_u32 s82, 1"); A(f"s_cbranch_scc1 {l2}"); A("s_cmp_gt_u32 s81, 5"); A(f"s_cbranch_scc1 {l2}")
        A("s_lshl_b32 s81, s81, 2"); A("s_add_u32 s81, s81, 40"); A(f"v_mov_b32 v{vT}, s80"); A(f"v_mov_b32 v{vT+1}, 0")
        A(f"buffer_store_dword v{vT}, v{vT+1}, s[76:79], s81 offen")
        LBL(l2)
        A("s_cmp_lg_u32 s2, 0"); A(f"s_cbranch_scc1 {l}")
        A("v_readlane_b32 s80, v0, 0"); A("v_readlane_b32 s81, v0, 2")
        for k,(reg,lane,cy) in enumerate(((0,62,0),(0,3,1),(23,40,0),(0,1,0),(0,8,0),(0,40,0),(0,41,0),(0,56,0),(0,57,0),(0,60,0))):
            A(f"v_readlane_b32 s82, v{reg}, {lane}"); A("s_nop 3"); A(f"s_sub_u32 s82, s82, s{81 if cy else 80}")
            A(f"v_mov_b32 v{vT}, s82"); A(f"v_mov_b32 v{vT+1}, 0"); A(f"buffer_store_dword v{vT}, v{vT+1}, s[76:79], 0 offen offset:{4*k}")
        LBL(l)
        return
    A("s_lshl_b32 s80, s2, 2"); A(f"s_add_u32 s80, s80, s{sW}"); A("s_mul_i32 s80, s80, 768")
    A("s_add_u32 s80, s80, 0x4000000")
    A("s_add_u32 s76, s70, s80"); A("s_addc_u32 s77, s71, 0"); A("s_mov_b32 s78, 768"); A("s_mov_b32 s79, 0x20000")
    A(f"v_lshrrev_b32 v{vT}, 2, v{vL16}")
    A(f"buffer_store_dword v0, v{vT}, s[76:79], 0 offen")
    A(f"buffer_store_dword v23, v{vT}, s[76:79], 0 offen offset:256")
    A(f"buffer_store_dword v25, v{vT}, s[76:79], 0 offen offset:512")

def emit(lst):
    for x in lst:
        if x.endswith(":"): L.append(x)
        else: A(x)
def I_kv(kind, slot, soff):
    s = sK if kind=='K' else sV
    r=[f"s_mov_b32 m0, s{slot}", f"s_add_u32 s{sT0}, s{soff}, 4096"]
    for n in range(4):
        v = vKd[n] if kind=='K' else vVd
        r.append(f"buffer_load_dwordx4 v{v}, {srd(s)}, s{soff} offen offset:{n*1024} {opt.kv_flags} lds")
    r += [f"s_add_u32 m0, s{slot}, 4096", f"s_add_u32 s{soff}, s{soff}, 32768"]
    for n in range(4):
        v = vKd[n] if kind=='K' else vVd
        r.append(f"buffer_load_dwordx4 v{v}, {srd(s)}, s{sT0} offen offset:{n*1024} {opt.kv_flags} lds")
    return r
def I_kvt(kind, slot, soff):
    r=[]
    for x in I_kv(kind, slot, soff):
        if x.startswith("buffer_") and int(opt.N)>0: r.append(f"s_waitcnt vmcnt({int(opt.N)-1}) ")
        r.append(x)
    return r
def merge_even(a, b):
    groups=[]; cur=[]
    for x in a:
        cur.append(x)
        if x.startswith("buffer_"): groups.append(cur); cur=[]
    if cur: groups[-1]+=cur
    tot=sum(cost(x) for x in b); out=[]; acc=0; g=0
    for i,x in enumerate(b):
        while g<len(groups) and acc>=tot*g/len(groups) and not (out and glued(out[-1])):
            out+=groups[g]; g+=1
        out.append(x); acc+=cost(x)
    while g<len(groups): out+=groups[g]; g+=1
    return out
def I_unit(s, vd, slot, soff, step, adv, n_instr=8):
    r=[]
    for n in range(n_instr):
        if n==0: r.append(f"s_mov_b32 m0, s{slot}")
        if n==4: r.append(f"s_add_u32 m0, s{slot}, 4096")
        r.append(f"s_add_u32 s{sT0}, s{soff}, {n*step-(n&3)*1024}")
        v = vd[n&3] if isinstance(vd,list) else vd
        r.append(f"buffer_load_dwordx4 v{v}, {srd(s)}, s{sT0} offen offset:{(n&3)*1024} lds")
    if adv: r.append(f"s_add_u32 s{soff}, s{soff}, {adv}")
    return r
def I_wq(slot): return I_unit(sWQ, vWqd, slot, sWqOff, 8*8192, 64*8192)
def I_wo(slot): return I_unit(sWO, vWod, slot, sWoOff, 4*1152, 32*1152)
def I_wx(slot): return I_unit(sWO, vWxd, slot, sWxOff, 8*1152, 256*1152)
def I_adv():
    return [f"s_add_u32 s{sSlot}, s{sSlot}, 8192", f"s_cmp_ge_u32 s{sSlot}, s{sRE}", f"s_cselect_b32 s{sSlot}, s{sRB}, s{sSlot}"]
def I_rdW(slot, vbase, dst):
    r=[f"v_add_u32 v{vT}, s{slot}, v{vbase}", f"v_xor_b32 v{vT+1}, 64, v{vT}"]
    for u in range(4):
        for tau in range(2):
            for w2 in range(2):
                r.append(f"ds_read_b64_tr_b16 {ar(dst+4*(u*2+tau)+2*w2,2)}, v{vT+tau} offset:{u*2048+w2*512}")
    return r
def I_mmW(src, xf, first=False):
    r=[]
    for u in range(4):
        for tau in range(2):
            c = "0" if (first and u==0) else ar(aPx+16*tau,16)
            r.append(f"{MFMA} {ar(aPx+16*tau,16)}, {ar(src+4*(u*2+tau),4)}, {xf(u)}, {c}")
    return r
def I_rdV(slot, dst):
    r=[f"v_add_u32 v{vT}, s{slot}, v{vVr}"]
    for t in range(1,4): r.append(f"v_xor_b32 v{vT+t}, {64*t}, v{vT}")
    for u in range(2):
        for t in range(4):
            for w2 in range(2):
                r.append(f"ds_read_b64_tr_b16 {ar(dst+8*t+4*u+2*w2,2)}, v{vT+t} offset:{u*4096+w2*1024}")
    return r
def I_rdK(slot, dst):
    r=[f"v_add_u32 v{vT+8}, s{slot}, v{vKr}", f"ds_read_b128 {ar(dst,4)}, v{vT+8}"]
    for s in range(1,8):
        r.append(f"v_xor_b32 v{vT+8+s}, {32*s}, v{vT+8}")
        r.append(f"ds_read_b128 {ar(dst+4*s,4)}, v{vT+8+s}")
    return r
def I_rdOF(preg):
    return [f"s_and_b32 s{sT0}, s{preg}, 3", f"s_xor_b32 s{sT0}, s{sT0}, 1", f"s_lshl_b32 s{sT0}, s{sT0}, 13",
            f"s_lshr_b32 s{sT1}, s{preg}, 2", f"s_lshl_b32 s{sT1}, s{sT1}, 11", f"s_add_u32 s{sT0}, s{sT0}, s{sT1}",
            f"s_add_u32 s{sT0}, s{sT0}, {AUX}", f"v_add_u32 v{vT+4}, s{sT0}, v{vL16}",
            f"ds_read_b128 {ar(aXF,4)}, v{vT+4}", f"ds_read_b128 {ar(aXF+4,4)}, v{vT+4} offset:1024"]
def I_mmO(src):
    return [f"{MFMA} {ar(aPm+16*t,16)}, {ar(src+8*t+4*u,4)}, {ar(aXF+4*u,4)}, {ar(aPm+16*t,16)}" for u in range(2) for t in range(4)]
def I_rdXFx():
    return [f"s_lshl_b32 s{sT0}, s{sW}, 1", f"s_and_b32 s{sT0}, s{sT0}, 3", f"s_lshl_b32 s{sT0}, s{sT0}, 13",
            f"s_lshr_b32 s{sT1}, s{sW}, 1", f"s_lshl_b32 s{sT1}, s{sT1}, 11", f"s_add_u32 s{sT0}, s{sT0}, s{sT1}",
            f"s_add_u32 s{sT0}, s{sT0}, {AUX}", f"v_add_u32 v{vT+4}, s{sT0}, v{vL16}",
            f"ds_read_b128 {ar(aXF,4)}, v{vT+4} offset:8192", f"ds_read_b128 {ar(aXF+4,4)}, v{vT+4} offset:{8192+1024}",
            f"ds_read_b128 {ar(aXF+8,4)}, v{vT+4}", f"ds_read_b128 {ar(aXF+12,4)}, v{vT+4} offset:1024"]
def I_qfrags(dst):
    return [f"v_accvgpr_read_b32 v{dst+i}, a{aPx+i}" for i in range(32)] + \
           [f"v_cvt_pk_bf16_f32 v{dst+i}, v{dst+2*i}, v{dst+2*i+1}" for i in range(16)]
def I_wait_side(n=16):
    l1=newlbl("w")
    return [f"s_bitcmp1_b32 s{sMSide}, s{sT}\n    s_cbranch_scc1 {l1}\n    s_waitcnt vmcnt({n})\n{l1}:\n    s_waitcnt vmcnt({n+8}) ; WS"]
def fix_ws(lst, base):
    k=0; out=[]
    for x in lst:
        if x.endswith("; WS"): x=I_wait_side(base+k)[0]
        if x.startswith("buffer_"): k+=1
        out.append(x)
    return out
def I_qk():
    r=[]
    for qt in range(2):
        for s in range(8):
            c = "0" if s==0 else vr(vX[qt],16)
            r.append(f"{MFMA} {vr(vX[qt],16)}, {ar(aKF+4*s,4)}, {ar(aQ+32*qt+4*s,4)}, {c}")
    return r
def I_fma(qt): return [f"v_fma_f32 v{vY[qt]+i}, v{vX[qt]+i}, s{sC}, -v{vMs[qt]}" for i in range(16)]
def I_pv():
    return [f"{MFMA} {vr(Oreg(t,qt),16)}, {ar(aVF+8*t+4*u,4)}, {vr(vP[qt]+4*u,4)}, {vr(Oreg(t,qt),16)}"
            for u in range(2) for t in range(4) for qt in range(2)]
def I_expsum():
    r=[]; pend=[]
    for qt in range(2):
        for j in range(8):
            y=vY[qt]+2*j
            r += [f"v_exp_f32 v{y}, v{y}", f"v_exp_f32 v{y+1}, v{y+1}"]
            r += pend
            pend=[f"v_pk_add_f32 {vr(vLs[qt],2)}, {vr(vLs[qt],2)}, {vr(y,2)}", f"v_cvt_pk_bf16_f32 v{vP[qt]+j}, v{y}, v{y+1}"]
    return r, pend
def cost(x):
    if x.endswith(":"): return 0
    if x.endswith("; WS"): return 12
    if x.startswith("v_exp"): return 8
    if x.startswith("buffer_"): return 12
    if x.startswith("ds_"): return 6
    if x.startswith("v_pk") or x.startswith("v_cvt"): return 5
    return 4
def weave(mf, fill):
    tot=sum(cost(x) for x in fill); out=[]; i=0; acc=0
    for k,m in enumerate(mf):
        out.append(m)
        tgt=tot*(k+1)/len(mf)
        while i<len(fill) and (acc+cost(fill[i])/2<=tgt or k==len(mf)-1 or fill[i].endswith(":") or (i>0 and glued(fill[i-1]))):
            out.append(fill[i]); acc+=cost(fill[i]); i+=1
    return out
def glued(x):
    return x.startswith("s_cmp")

def main_kernel(name):
    L.append(f".globl {name}\n.p2align 8\n.type {name},@function")
    LBL(name)
    A("s_cmp_ge_u32 s2, 256")
    A("s_cbranch_scc1 L_done")
    A("s_load_dwordx8 s[60:67], s[0:1], 0")
    A("s_load_dwordx2 s[68:69], s[0:1], 32")
    A("s_load_dwordx2 s[70:71], s[0:1], 56")
    A("v_lshrrev_b32 v32, 6, v0")
    A("v_and_b32 v31, 63, v0")
    A(f"v_readfirstlane_b32 s{sW}, v32")
    A("v_lshrrev_b32 v33, 4, v31")
    A("v_and_b32 v34, 15, v31")
    A("v_xor_b32 v35, v34, v33")
    A("v_lshlrev_b32 v35, 4, v35")
    A(f"v_lshl_add_u32 v{vKd[0]}, v33, 8, v35")
    A("v_mul_u32_u24 v36, 1152, v33")
    for n in range(4):
        A(f"v_xor_b32 v{44+n}, {64*n}, v35")
        A(f"v_add_u32 v{44+n}, v36, v{44+n}")
    A("v_lshrrev_b32 v38, 3, v31")
    A("v_and_b32 v37, 1, v33")
    A("v_lshlrev_b32 v37, 2, v37")
    A("v_and_b32 v39, 7, v31")
    A("v_xor_b32 v37, v37, v39")
    A("v_lshlrev_b32 v37, 4, v37")
    A(f"v_lshl_add_u32 v{vWqd}, v38, 13, v37")
    A("v_mul_u32_u24 v38, 1152, v38")
    A(f"v_add_u32 v{vWxd}, v38, v37")
    for n in range(1,4): A(f"v_xor_b32 v{vKd[n]}, {64*n}, v{vKd[0]}")
    A(f"s_lshl_b32 s{sRB}, s{sW}, 15")
    A(f"s_add_u32 s{sRE}, s{sRB}, 24576")
    A(f"s_mov_b32 s{sSS}, s{sRE}")
    A(f"s_lshl_b32 s{sBw}, s{sW}, 13")
    A(f"s_add_u32 s{sBw}, s{sBw}, {AUX}")
    A(f"s_lshl_b32 s{sKoff}, s{sW}, 13")
    A(f"s_mov_b32 s{sVoff}, s{sKoff}")
    A(f"s_and_b32 s{sT2}, s2, 7")
    A(f"s_lshr_b32 s{sT3}, s2, 3")
    A(f"s_lshl_b32 s{sWqOff}, s{sT2}, 10")
    A(f"s_lshl_b32 s{sT0}, s{sW}, 7")
    A(f"s_add_u32 s{sWqOff}, s{sWqOff}, s{sT0}")
    A(f"s_mul_i32 s{sXoff}, s{sT3}, 36864")
    A(f"s_add_u32 s{sTail}, s{sXoff}, 1024")
    A(f"s_lshl_b32 s{sT0}, s{sW}, 8")
    A(f"s_add_u32 s{sXoff}, s{sXoff}, s{sT0}")
    A(f"s_mul_i32 s{sWoOff}, s{sT2}, {512*1152}")
    A(f"s_mul_i32 s{sT1}, s{sW}, {64*1152}")
    A(f"s_add_u32 s{sWxOff}, s{sWoOff}, s{sT1}")
    A(f"s_add_u32 s{sWxOff}, s{sWxOff}, 1024")
    A(f"s_add_u32 s{sWoOff}, s{sWoOff}, s{sT0}")
    A("s_lshl_b32 s72, s2, 20")
    A("s_lshr_b32 s73, s2, 12")
    A("s_mul_i32 s74, s2, 73728")
    A(f"s_lshl_b32 s{sT1}, s{sT3}, 2")
    A(f"s_add_u32 s{sT1}, s{sT1}, s{sW}")
    A(f"s_mul_i32 s{sT1}, s{sT1}, 36")
    A(f"v_add_u32 v40, s{sT1}, v31")
    A(f"s_lshl_b32 s{sT1}, s{sT2}, 10")
    A("v_lshrrev_b32 v41, 3, v40")
    A("v_and_b32 v42, 7, v40")
    A("v_lshlrev_b32 v42, 7, v42")
    A("v_lshl_add_u32 v41, v41, 13, v42")
    A(f"v_add_u32 v41, s{sT1}, v41")
    A(f"s_mul_i32 s{sT1}, s{sT2}, 589824")
    A("v_lshlrev_b32 v40, 7, v40")
    A(f"v_add_u32 v40, s{sT1}, v40")
    A("v_cmp_gt_u32 vcc, 36, v31")
    A("v_mov_b32 v42, 0x7f000000")
    A("s_nop 0")
    R1=sT2; R2=sT3
    A(f"v_cndmask_b32 v{vX0}, v42, v41, vcc")
    A(f"v_cndmask_b32 v{vX1}, v42, v40, vcc")
    A(f"s_add_u32 s{R1}, s{sRB}, 8192")
    A(f"s_add_u32 s{R2}, s{sRB}, 16384")
    def mk(s, lo, hi, size=0, add=None):
        if add:
            A(f"s_add_u32 s{s}, s{lo}, s{add[0]}")
            A(f"s_addc_u32 s{s+1}, s{hi}, {add[1]}")
        else:
            A(f"s_mov_b32 s{s}, s{lo}"); A(f"s_mov_b32 s{s+1}, s{hi}")
    for s,size in ((sWQ,576*8192),(sX,32*36864),(sK,1<<20),(sV,1<<20),(sWO,4096*1152),(sWS,73728)):
        A(f"s_mov_b32 s{s+2}, {size}"); A(f"s_mov_b32 s{s+3}, 0x20000")
    A("s_waitcnt lgkmcnt(0)")
    mk(sX,60,61); mk(sK,62,63,0,(72,"s73")); mk(sWQ,66,67)
    stamp(0); cyc(2)
    A(f"buffer_load_dword v{vD0}, v{vX0}, {srd(sWQ)}, 0 offen")
    emit(I_unit(sX,[44,45,46,47],sBw,sXoff,4*1152,0))
    emit(I_unit(sX,vWxd,sSS,sTail,8*1152,0,4))
    emit(I_kv('K', sRB, sKoff))
    emit(I_wq(R1)); emit(I_wq(R2))
    mk(sV,64,65,0,(72,"s73")); mk(sWO,68,69); mk(sWS,70,71,0,(74,"0"))
    A(f"v_lshlrev_b32 v{vL16}, 4, v31")
    A(f"v_lshlrev_b32 v{vL8}, 3, v31")
    A("v_lshlrev_b32 v35, 2, v33")
    A("v_xor_b32 v35, v34, v35")
    A("v_lshlrev_b32 v35, 4, v35")
    A(f"v_lshl_add_u32 v{vVd}, v33, 8, v35")
    A(f"v_add_u32 v{vWod}, v36, v35")
    A("v_and_b32 v36, 31, v31")
    A("v_lshrrev_b32 v37, 5, v31")
    A("v_and_b32 v39, 15, v36")
    A("v_xor_b32 v39, v39, v37")
    A("v_lshlrev_b32 v39, 4, v39")
    A(f"v_lshl_add_u32 v{vXr}, v36, 8, v39")
    A(f"v_add_u32 v{vXr}, {AUX}, v{vXr}")
    A("v_and_b32 v39, 2, v36")
    A("v_lshl_or_b32 v39, v39, 1, v37")
    A("v_lshlrev_b32 v39, 4, v39")
    A("v_lshl_add_u32 v43, v36, 7, v39")
    A(f"v_add_u32 v43, s{sSS}, v43")
    A("v_and_b32 v38, 0x13, v36")
    A("v_and_b32 v39, 4, v36")
    A("v_lshl_or_b32 v38, v39, 1, v38")
    A("v_and_b32 v39, 8, v36")
    A("v_lshrrev_b32 v39, 1, v39")
    A("v_or_b32 v38, v38, v39")
    A("v_and_b32 v39, 15, v38")
    A("v_xor_b32 v39, v39, v37")
    A("v_lshlrev_b32 v39, 4, v39")
    A(f"v_lshl_add_u32 v{vKr}, v38, 8, v39")
    A("v_bfe_u32 v38, v31, 2, 2")
    A("v_lshl_add_u32 v39, v37, 3, v38")
    A("v_and_b32 v40, 1, v33")
    A("v_lshlrev_b32 v40, 5, v40")
    A("v_and_b32 v41, 1, v31")
    A("v_lshl_or_b32 v40, v41, 4, v40")
    A("v_and_b32 v41, 2, v31")
    A("v_lshl_or_b32 v40, v41, 2, v40")
    A(f"v_xor_b32 v41, s{sW}, v38")
    A("v_lshl_or_b32 v41, v41, 6, v40")
    A(f"v_lshl_add_u32 v{vVr}, v39, 8, v41")
    A("v_lshrrev_b32 v41, 1, v38")
    A("v_lshl_or_b32 v41, v41, 6, v40")
    A(f"v_lshl_add_u32 v{vWr}, v39, 7, v41")
    A(f"s_lshl_b32 s{sT0}, s{sW}, 5")
    A(f"v_xor_b32 v{vWrX}, s{sT0}, v{vWr}")
    A(f"s_xor_b32 s{sSSp}, s{sSS}, 32768")
    A(f"s_xor_b32 s{sBp}, s{sBw}, 8192")
    A(f"s_mov_b32 s{sC}, 0x{f2u(SCALE):08x}")
    A(f"s_mov_b32 s{sThr}, 0x{f2u(float(opt.thr)):08x}")
    A(f"s_mov_b32 s{sMConsW}, 0x000101ff")
    A(f"s_mov_b32 s{sMXrd}, 0x000001fe")
    A(f"s_mov_b32 s{sMIssWq}, 0x000000ff")
    A(f"s_mov_b32 s{sMIssVo}, 0x00ff0000")
    A(f"s_mov_b32 s{sMSide}, 0x01ff01ff")
    A(f"s_mov_b32 s{sMSpec}, 0x{(1<<9)|(1<<10)|(1<<14)|(1<<25)|(1<<30):08x}")
    A(f"s_mov_b32 s{sFree}, s{R2}")
    A(f"s_mov_b32 s{sP}, 0")
    A(f"s_mov_b32 s{sT}, 0")
    A(f"s_mov_b32 s{sSlot}, s{sRB}")
    A(f"v_mov_b32 v{vMs[0]}, 0"); A(f"v_mov_b32 v{vMs[1]}, 0")
    for u in range(1,4): A(f"v_xor_b32 v{43 - u}, {32*u}, v43")
    A("s_waitcnt vmcnt(24)")
    stamp(40,23)
    for u in range(4): A(f"ds_read_b128 {ar(aXF+4*u,4)}, v{43-u}")
    A("s_waitcnt lgkmcnt(0)")
    emit(I_wq(sSS))
    A("s_barrier")
    A("s_waitcnt vmcnt(24)")
    emit(I_rdK(sRB, aKF))
    A("s_waitcnt lgkmcnt(0)")
    emit(I_kv('K', sRB, sKoff))
    slots=[R1,R2,sSS]
    def piece(p, n, nxt):
        A(f"s_waitcnt vmcnt({n})")
        stamp(41+p,23)
        emit(I_rdW(slots[p%3], vWr, aPm))
        if p<8:
            for u in range(4):
                A(f"v_xor_b32 v{vT+2+u}, {128*(p&1)+32*u}, v{vXr}")
                A(f"ds_read_b128 {vr(vX[0]+4*u,4)}, v{vT+2+u} offset:{(p>>1)*8192}")
            xf=lambda u: vr(vX[0]+4*u,4)
        else: xf=lambda u: ar(aXF+4*u,4)
        A("s_waitcnt lgkmcnt(0)")
        emit(weave(I_mmW(aPm, xf, first=(p==0)), nxt) if nxt else I_mmW(aPm, xf))
    for p in range(3): piece(p, 24, I_wq(slots[p]))
    A("s_waitcnt vmcnt(24)")
    emit(I_rdK(sRB, aVF))
    A("s_waitcnt lgkmcnt(0)")
    emit(I_kv('V', sRB, sVoff))
    for p in range(3,6): piece(p, 24, I_wq(slots[p%3]))
    piece(6, 16, I_kv('K', R1, sKoff))
    piece(7, 16, [])
    piece(8, 8, [])
    A(f"buffer_load_dword v{vD0}, v{vX1}, {srd(sWO)}, 0 offen")
    A(f"s_sub_u32 s{sWqOff}, s{sWqOff}, {64*8192-512}")
    A(f"v_add_u32 v{vT}, s{sSS}, v{vL16}")
    A(f"v_add_u32 v{vT+1}, 24576, v{vL16}")
    A(f"v_add_u32 v{vT+2}, {24576+65536}, v{vL16}")
    A("s_nop 7")
    emit(I_qfrags(vY[0]))
    for f in range(4): A(f"ds_write_b128 v{vT}, {vr(vY[0]+4*f,4)} offset:{f*1024}")
    for i in range(32): A(f"v_accvgpr_write_b32 a{aPx+i}, 0")
    A("s_waitcnt lgkmcnt(0)")
    A("s_barrier")
    for f in range(16): A(f"ds_read_b128 {ar(aQ+4*f,4)}, v{vT+1+(f>>3)} offset:{((f>>2)&1)*32768+(f&3)*1024}")
    A("s_waitcnt lgkmcnt(0)")
    stamp(1)
    qk=I_qk()
    emit(qk[:12])
    emit(weave(qk[12:], ["s_nop 7"]+I_fma(0)))
    A("s_barrier")
    emit(I_wq(sSS))
    A(f"s_sub_u32 s{sWqOff}, s{sWqOff}, {576*8192}")
    for i in range(32): A(f"v_accvgpr_mov_b32 a{aKF+i}, a{aVF+i}")
    emit(I_fma(1))
    A(f"s_mov_b32 s{sFirst}, 1")
    A("s_branch L_rare")
    ex, ex_tail = I_expsum()
    qk=I_qk()
    L.append(".p2align 6")
    LBL("L_loop")
    A("s_waitcnt lgkmcnt(0)")
    fine(0)
    emit(weave(qk, merge_even(I_kvt('V', sFree, sVoff), ex)))
    emit(ex_tail)
    fine(1)
    emit(I_wait_side())
    stamp(0,23,True)
    fine(2)
    emit(I_rdV(sSlot, aVF))
    emit(I_fma(0))
    pv=I_pv()
    f1=I_fma(1)
    for k in range(4):
        if k%2==0: A(f"s_waitcnt lgkmcnt({14-k})")
        A(pv[k]); emit(f1[4*k:4*k+4])
    A("s_waitcnt lgkmcnt(0)")
    fine(3)
    mx=[]
    allY=[vY[0]+i for i in range(16)]+[vY[1]+i for i in range(16)]
    mx.append(f"v_max3_f32 v{vX0}, v{allY[0]}, v{allY[1]}, v{allY[2]}")
    mx.append(f"v_max3_f32 v{vX1}, v{allY[16]}, v{allY[17]}, v{allY[18]}")
    for i in range(6):
        mx.append(f"v_max3_f32 v{vX0}, v{vX0}, v{allY[3+2*i]}, v{allY[4+2*i]}")
        mx.append(f"v_max3_f32 v{vX1}, v{vX1}, v{allY[19+2*i]}, v{allY[20+2*i]}")
    mx.append(f"v_max3_f32 v{vX0}, v{vX0}, v{allY[15]}, v{allY[31]}")
    mx.append(f"v_max_f32 v{vX0}, v{vX0}, v{vX1}")
    mx.append(f"v_cmp_lt_f32 vcc, s{sThr}, v{vX0}")
    rest = [f"s_mov_b32 s{sT2}, s{sSlot}"] + I_adv() + mx[:14] + I_wait_side() + [f"s_mov_b32 s{sFree}, s{sSlot}"] + I_rdK(sSlot, aKF) + I_adv() + mx[14:]
    fill = fix_ws(rest[:1] + merge_even(I_kvt('K', sT2, sKoff), rest[1:]), 8)
    emit(weave(pv[4:], fill))
    fine(4)
    stamp(8,0,True)
    A(f"s_and_b32 s{sT1}, s{sT}, 15")
    A(f"s_cmp_eq_u32 s{sT1}, 15")
    A("s_cbranch_scc1 L_combine")
    A("s_cbranch_vccnz L_rare")
    LBL("L_rare_ret")
    A(f"s_bitcmp1_b32 s{sMSide}, s{sT}")
    A("s_cbranch_scc0 L_noside")
    A("s_waitcnt vmcnt(16)")
    fine(5)
    A(f"s_bitcmp1_b32 s{sMConsW}, s{sT}")
    A("s_cbranch_scc0 L_consV")
    emit(I_rdW(sSS, vWr, aVF))
    A(f"s_bitcmp1_b32 s{sMXrd}, s{sT}")
    A("s_cbranch_scc0 L_noxrd")
    A(f"s_and_b32 s{sT0}, s{sP}, 1"); A(f"s_lshl_b32 s{sT0}, s{sT0}, 7")
    A(f"s_lshr_b32 s{sT1}, s{sP}, 1"); A(f"s_lshl_b32 s{sT1}, s{sT1}, 13")
    A(f"v_xor_b32 v{vT+2}, s{sT0}, v{vXr}")
    A(f"v_add_u32 v{vT+2}, s{sT1}, v{vT+2}")
    A(f"s_add_u32 s{sP}, s{sP}, 1")
    A(f"ds_read_b128 {ar(aXF,4)}, v{vT+2}")
    for u in range(1,4):
        A(f"v_xor_b32 v{vT+2+u}, {32*u}, v{vT+2}")
        A(f"ds_read_b128 {ar(aXF+4*u,4)}, v{vT+2+u}")
    LBL("L_noxrd")
    A("s_waitcnt lgkmcnt(0)")
    emit(I_mmW(aVF, lambda u: ar(aXF+4*u,4)))
    A("s_branch L_issue")
    LBL("L_consV")
    emit(I_rdV(sSS, aVF))
    emit(I_rdOF(sP))
    A(f"s_add_u32 s{sP}, s{sP}, 1")
    A("s_waitcnt lgkmcnt(0)")
    emit(I_mmO(aVF))
    LBL("L_issue")
    fine(6)
    A(f"s_bitcmp1_b32 s{sMIssWq}, s{sT}")
    A("s_cbranch_scc0 L_issVo")
    emit(I_wq(sSS))
    A("s_branch L_noside")
    LBL("L_issVo")
    A(f"s_bitcmp1_b32 s{sMIssVo}, s{sT}")
    A("s_cbranch_scc0 L_noside")
    emit(I_wo(sSS))
    LBL("L_noside")
    fine(7)
    A(f"s_bitcmp1_b32 s{sMSpec}, s{sT}")
    A("s_cbranch_scc1 L_special")
    LBL("L_spec_ret")
    A(f"s_add_u32 s{sT}, s{sT}, 1")
    A("s_branch L_loop")
    LBL("L_special")
    A(f"s_and_b32 s{sT1}, s{sT}, 15")
    A(f"s_cmp_eq_u32 s{sT1}, 14")
    A("s_cbranch_scc1 L_sp14")
    A("s_waitcnt lgkmcnt(0)")
    A("s_barrier")
    A(f"s_cmp_lg_u32 s{sT}, 9")
    A("s_cbranch_scc1 L_spec_ret")
    emit(I_qfrags(vX[0]))
    A(f"v_add_u32 v{vT}, s{sBw}, v{vL16}")
    for f in range(4): A(f"ds_write_b128 v{vT}, {vr(vX[0]+4*f,4)} offset:{f*1024}")
    A("s_branch L_spec_ret")
    LBL("L_sp14")
    for qt in range(2):
        A(f"v_mov_b32 v{vMf[qt]}, v{vMs[qt]}"); A(f"v_mov_b32 v{vMs[qt]}, 0")
    A(f"s_cmp_lg_u32 s{sT}, 14")
    A("s_cbranch_scc1 L_spec_ret")
    A(f"v_add_u32 v{vT}, {AUX}, v{vL16}")
    for f in range(16): A(f"ds_read_b128 {ar(aQ+4*f,4)}, v{vT} offset:{(f>>2)*8192+(f&3)*1024}")
    A("s_waitcnt lgkmcnt(0)")
    A("s_barrier")
    A("s_branch L_spec_ret")
    LBL("L_rare")
    for qt,d in ((0,vX0),(1,vX1)): A(f"v_max3_f32 v{d}, v{vY[qt]}, v{vY[qt]+1}, v{vY[qt]+2}")
    for i in range(6):
        for qt,d in ((0,vX0),(1,vX1)): A(f"v_max3_f32 v{d}, v{d}, v{vY[qt]+3+2*i}, v{vY[qt]+4+2*i}")
    for qt,d in ((0,vX0),(1,vX1)): A(f"v_max_f32 v{d}, v{d}, v{vY[qt]+15}")
    A("s_nop 1")
    A(f"v_permlane32_swap_b32 v{vX0}, v{vX1}")
    A(f"v_max_f32 v{vX0}, v{vX0}, v{vX1}")
    A(f"s_cmp_lg_u32 s{sFirst}, 0")
    A("s_cbranch_scc1 L_r1")
    A(f"v_max_f32 v{vX0}, 0, v{vX0}")
    LBL("L_r1")
    A(f"v_mov_b32 v{vX1}, v{vX0}")
    A("s_nop 1")
    A(f"v_permlane32_swap_b32 v{vX0}, v{vX1}")
    for qt,d in ((0,vX0),(1,vX1)): A(f"v_add_f32 v{vMs[qt]}, v{vMs[qt]}, v{d}")
    for i in range(16):
        for qt,d in ((0,vX0),(1,vX1)): A(f"v_sub_f32 v{vY[qt]+i}, v{vY[qt]+i}, v{d}")
    A("s_cbranch_scc1 L_r2")
    for qt,d in ((0,vX0),(1,vX1)): A(f"v_exp_f32 v{vAl[qt]}, -v{d}")
    A("s_nop 0")
    for qt in range(2): A(f"v_pk_mul_f32 {vr(vLs[qt],2)}, {vr(vLs[qt],2)}, {vr(vAl[qt],2)} op_sel_hi:[1,0]")
    for t in range(4):
        for qt in range(2):
            for i in range(0,16,2):
                o=Oreg(t,qt)+i
                A(f"v_pk_mul_f32 {vr(o,2)}, {vr(o,2)}, {vr(vAl[qt],2)} op_sel_hi:[1,0]")
    A("s_branch L_rare_ret")
    LBL("L_r2")
    for i in range(0,128,2): A(f"v_pk_mov_b32 {vr(vO+i,2)}, 0, 0")
    for qt in range(2): A(f"v_pk_mov_b32 {vr(vLs[qt],2)}, 0, 0")
    A(f"s_mov_b32 s{sFirst}, 0")
    A("s_branch L_loop")
    LBL("L_combine")
    A(f"s_add_u32 s{sT}, s{sT}, 1")
    stamp(24,0,True)
    A(f"s_cmp_eq_u32 s{sT}, 32")
    A("s_cbranch_scc0 L_c1")
    A("s_waitcnt vmcnt(0)")
    emit(I_wx(sSlot)); emit(I_adv())
    emit(I_wo(sSlot)); emit(I_adv())
    LBL("L_c1")
    E=vT
    A(f"v_add_f32 v{vLs[0]}, v{vLs[0]}, v{vLs[0]+1}")
    A(f"v_add_f32 v{vLs[1]}, v{vLs[1]}, v{vLs[1]+1}")
    A(f"v_add_u32 v{E}, s{sSS}, v{vL16}")
    A(f"v_add_u32 v{E+1}, s{sBw}, v{vL16}")
    A(f"v_permlane32_swap_b32 v{vMf[0]}, v{vMf[1]}")
    A(f"v_permlane32_swap_b32 v{vLs[0]}, v{vLs[1]}")
    A(f"v_add_u32 v{E+2}, s{sFree}, v{vL8}")
    A(f"v_mov_b32 v{vD0}, v{vMf[0]}")
    A(f"v_add_f32 v{vD1}, v{vLs[0]}, v{vLs[1]}")
    A(f"v_add_u32 v{E+3}, s{sSSp}, v{vL16}")
    A(f"v_add_u32 v{E+4}, s{sBp}, v{vL16}")
    A(f"v_xor_b32 v{E+5}, 32768, v{E+2}")
    A("s_waitcnt lgkmcnt(0)")
    A(f"ds_write_b64 v{E+2}, {vr(vD0,2)}")
    for i in range(8): A(f"ds_write_b128 v{E+1}, {vr(Oreg(3,0)+4*i,4)} offset:{i*1024}")
    for i in range(8): A(f"ds_write_b128 v{E}, {vr(Oreg(1,0)+4*i,4)} offset:{i*1024}")
    A(f"v_add_u32 v{E+6}, s{sBp}, v{vL8}")
    A(f"v_xor_b32 v{E+7}, 65536, v{E+3}")
    A(f"v_xor_b32 v{E+8}, 16384, v{E+6}")
    A("s_waitcnt lgkmcnt(0)")
    A("s_barrier")
    cyc(4) if False else None
    A(f"ds_read_b64 {vr(vMf[0],2)}, v{E+5}")
    for i in range(8): A(f"ds_read_b128 {vr(Oreg(3,0)+4*i,4)}, v{E+4} offset:{i*1024}")
    for i in range(6): A(f"ds_read_b128 {vr(Oreg(1,0)+4*i,4)}, v{E+3} offset:{i*1024}")
    A("s_waitcnt lgkmcnt(14)")
    for i in range(6,8): A(f"ds_read_b128 {vr(Oreg(1,0)+4*i,4)}, v{E+3} offset:{i*1024}")
    def factors(final):
        A(f"v_max_f32 v{vX0}, v{vD0}, v{vMf[0]}")
        A(f"v_sub_f32 v{vD0}, v{vD0}, v{vX0}")
        A(f"v_sub_f32 v{vMf[0]}, v{vMf[0]}, v{vX0}")
        A(f"v_exp_f32 v{vAl[0]}, v{vD0}")
        A(f"v_exp_f32 v{vLs[0]}, v{vMf[0]}")
        A(f"v_mov_b32 v{vD0}, v{vX0}")
        A(f"v_mul_f32 v{vD1}, v{vD1}, v{vAl[0]}")
        A(f"v_fmac_f32 v{vD1}, v{vMf[1]}, v{vLs[0]}")
        if final:
            A(f"v_rcp_f32 v{vX1}, v{vD1}")
            A("s_nop 0")
            A(f"v_mul_f32 v{vAl[0]}, v{vAl[0]}, v{vX1}")
            A(f"v_mul_f32 v{vLs[0]}, v{vLs[0]}, v{vX1}")
        A(f"v_mov_b32 v{vAl[1]}, v{vAl[0]}")
        A(f"v_mov_b32 v{vLs[1]}, v{vLs[0]}")
        A("s_nop 1")
        A(f"v_permlane32_swap_b32 v{vAl[0]}, v{vAl[1]}")
        A(f"v_permlane32_swap_b32 v{vLs[0]}, v{vLs[1]}")
    def scale_own(t):
        for qt in range(2):
            for i in range(0,16,2):
                o=Oreg(t,qt)+i
                A(f"v_pk_mul_f32 {vr(o,2)}, {vr(o,2)}, {vr(vAl[qt],2)} op_sel_hi:[1,0]")
    def add_rcv(t, rt):
        for qt in range(2):
            for i in range(0,16,2):
                o=Oreg(t,qt)+i; r=Oreg(rt,qt)+i
                A(f"v_pk_fma_f32 {vr(o,2)}, {vr(r,2)}, {vr(vLs[qt],2)}, {vr(o,2)} op_sel_hi:[1,0,1]")
    factors(False)
    scale_own(2)
    A("s_waitcnt lgkmcnt(8)")
    add_rcv(2,3)
    A("s_waitcnt lgkmcnt(0)")
    for i in range(8): A(f"ds_write_b128 v{E+3}, {vr(Oreg(2,0)+4*i,4)} offset:{i*1024}")
    A(f"ds_write_b64 v{E+6}, {vr(vD0,2)} offset:4096")
    scale_own(0)
    add_rcv(0,1)
    A("s_waitcnt lgkmcnt(0)")
    A("s_barrier")
    A(f"ds_read_b64 {vr(vMf[0],2)}, v{E+8} offset:4096")
    for i in range(8): A(f"ds_read_b128 {vr(Oreg(1,0)+4*i,4)}, v{E+7} offset:{i*1024}")
    A("s_waitcnt lgkmcnt(8)")
    factors(True)
    scale_own(0)
    A("s_waitcnt lgkmcnt(0)")
    add_rcv(0,1)
    for i in range(16): A(f"v_cvt_pk_bf16_f32 v{Oreg(1,0)+i}, v{Oreg(0,0)+2*i}, v{Oreg(0,0)+2*i+1}")
    for f in range(4): A(f"ds_write_b128 v{E+4}, {vr(Oreg(1,0)+4*f,4)} offset:{f*1024}")
    A(f"s_mov_b32 s{sP}, 0")
    A("s_waitcnt lgkmcnt(0)")
    A("s_barrier")
    stamp(25,0,True)
    emit(I_rdXFx())
    A(f"s_cmp_eq_u32 s{sT}, 32")
    A("s_cbranch_scc1 L_tail")
    emit(I_wx(sSS))
    A(f"v_mov_b32 v{vWr}, v{vWrX}")
    for i in range(96): A(f"v_accvgpr_write_b32 a{aPm+i}, 0")
    A(f"s_mov_b32 s{sFirst}, 2")
    A("s_waitcnt lgkmcnt(0)")
    A("s_branch L_rare")
    LBL("L_tail")
    emit(I_wo(sFree))
    emit(I_wo(sSS))
    order=[]
    emit(I_adv())
    A(f"s_mov_b32 s{sT2}, s{sSlot}")
    emit(I_adv())
    A(f"s_mov_b32 s{sT3}, s{sSlot}")
    ring=[sT3, sFree, sSS, sT2]
    A("s_waitcnt vmcnt(24)")
    emit(I_rdW(sT2, vWr, aKF))
    A("s_waitcnt lgkmcnt(0)")
    emit(weave(I_mmW(aKF, lambda u: ar(aXF+4*u,4)), I_wo(sT2)))
    A(f"v_add_u32 v{vT+4}, {AUX}, v{vL16}")
    for p in range(8):
        A(f"s_waitcnt vmcnt({min(3,7-p)*8})")
        src = aVF if p%2==0 else aKF
        emit(I_rdV(ring[p%4], src))
        off=((p&3)^1)*8192+(p>>2)*2048
        xf = aXF+8*(p&1)
        A(f"ds_read_b128 {ar(xf,4)}, v{vT+4} offset:{off}")
        A(f"ds_read_b128 {ar(xf+4,4)}, v{vT+4} offset:{off+1024}")
        A("s_waitcnt lgkmcnt(0)")
        mm=[f"{MFMA} {ar(aPm+16*t,16)}, {ar(src+8*t+4*u,4)}, {ar(xf+4*u,4)}, {ar(aPm+16*t,16)}" for u in range(2) for t in range(4)]
        emit(weave(mm, I_wo(ring[p%4])) if p<4 else mm)
    stamp(60)
    A(f"v_add_u32 v{vT}, s{sRB}, v{vL16}")
    for i in range(2,8): A(f"ds_write_b128 v{vT}, {ar(aPx+4*i,4)} offset:{i*1024}")
    for i in range(8): A(f"v_accvgpr_read_b32 v{vX[0]+i}, a{aPx+i}")
    for b in range(1,4): A(f"v_xor_b32 v{vT+b}, {b*32768}, v{vT}")
    A(f"s_mul_i32 s{sT1}, s{sW}, 18432")
    A("s_waitcnt lgkmcnt(0)")
    A("s_barrier")
    for b in range(1,4):
        for j in range(2): A(f"ds_read_b128 {vr(vY[0]+8*b+4*j,4)}, v{vT+b} offset:{(2*b+j)*1024}")
    for i in range(16):
        if i%4==0: A(f"s_add_u32 s{sT0}, s{sT1}, {i*1024}")
        A(f"buffer_store_dwordx4 {ar(aPm+4*i,4)}, v{vL16}, {srd(sWS)}, s{sT0} offen offset:{(i&3)*1024} {opt.part_flags}")
    A(f"s_add_u32 s{sT0}, s{sT1}, {16*1024}")
    A("s_waitcnt lgkmcnt(0)")
    for b in range(1,4):
        for i in range(0,8,2): A(f"v_pk_add_f32 {vr(vX[0]+i,2)}, {vr(vX[0]+i,2)}, {vr(vY[0]+8*b+i,2)}")
    for j in range(2):
        A(f"buffer_store_dwordx4 {vr(vX[0]+4*j,4)}, v{vL16}, {srd(sWS)}, s{sT0} offen offset:{j*1024} {opt.part_flags}")
    if opt.stamps:
        stamp(61); A("s_waitcnt vmcnt(0)"); stamp(62); cyc(3); stamp_out()
    LBL("L_done")
    A("s_endpgm")

def reduce_kernel(name):
    L.append(f".globl {name}\n.p2align 8\n.type {name},@function")
    LBL(name)
    A("s_cmp_ge_u32 s2, 1152")
    A("s_cbranch_scc1 L_rdone")
    A("s_load_dwordx2 s[4:5], s[0:1], 56")
    A("s_load_dwordx2 s[6:7], s[0:1], 40")
    A("s_mul_hi_u32 s8, s2, 0x1c71c71d")
    A("s_mul_i32 s9, s8, 9")
    A("s_sub_u32 s9, s2, s9")
    A("s_and_b32 s10, s8, 3")
    A("s_lshr_b32 s11, s8, 2")
    A(f"s_mul_i32 s12, s11, {8*73728}")
    A("s_mul_i32 s13, s10, 18432")
    A("s_add_u32 s12, s12, s13")
    A("s_lshl_b32 s13, s9, 11")
    A("s_add_u32 s12, s12, s13")
    A("v_lshlrev_b32 v1, 4, v0")
    A("s_lshr_b32 s13, s9, 1")
    A("s_xor_b32 s13, s13, s10")
    A("s_lshl_b32 s13, s13, 5")
    A("s_lshl_b32 s14, s10, 7")
    A("s_add_u32 s13, s13, s14")
    A("s_and_b32 s14, s9, 1")
    A("s_lshl_b32 s14, s14, 4")
    A("s_add_u32 s13, s13, s14")
    A("s_lshl_b32 s14, s10, 4")
    A("s_add_u32 s14, s14, 512")
    A("s_cmp_eq_u32 s9, 8")
    A("s_cselect_b32 s13, s14, s13")
    A("s_lshl_b32 s13, s13, 1")
    A("s_mul_i32 s14, s11, 36864")
    A("s_add_u32 s13, s13, s14")
    A("v_and_b32 v2, 31, v0")
    A("v_mul_u32_u24 v2, 1152, v2")
    A("v_lshrrev_b32 v3, 5, v0")
    A("v_lshl_add_u32 v2, v3, 4, v2")
    A(f"s_mov_b32 s18, {256*73728}"); A("s_mov_b32 s19, 0x20000")
    A(f"s_mov_b32 s22, {1024*1152}"); A("s_mov_b32 s23, 0x20000")
    A("s_waitcnt lgkmcnt(0)")
    A("s_mov_b32 s16, s4"); A("s_mov_b32 s17, s5")
    A("s_mov_b32 s20, s6"); A("s_mov_b32 s21, s7")
    for hp in range(8):
        A(f"buffer_load_dwordx4 {vr(8+8*hp,4)}, v1, s[16:19], s12 offen {opt.red_flags}")
        A(f"buffer_load_dwordx4 {vr(12+8*hp,4)}, v1, s[16:19], s12 offen offset:1024 {opt.red_flags}")
        if hp<7: A("s_add_u32 s12, s12, 73728")
    for hp in range(1,8):
        A(f"s_waitcnt vmcnt({14-2*hp})")
        for i in range(0,8,2): A(f"v_pk_add_f32 {vr(8+i,2)}, {vr(8+i,2)}, {vr(8+8*hp+i,2)}")
    for i in range(4): A(f"v_cvt_pk_bf16_f32 v{4+i}, v{8+2*i}, v{9+2*i}")
    A("buffer_store_dwordx4 v[4:7], v2, s[20:23], s13 offen")
    LBL("L_rdone")
    A("s_endpgm")

def desc(name, vgpr, acc, sgpr):
    return f""".p2align 6
.amdhsa_kernel {name}
  .amdhsa_next_free_vgpr {vgpr}
  .amdhsa_next_free_sgpr {sgpr}
  .amdhsa_accum_offset {acc}
  .amdhsa_group_segment_fixed_size 0
  .amdhsa_kernarg_size 64
  .amdhsa_user_sgpr_count 2
  .amdhsa_user_sgpr_kernarg_segment_ptr 1
  .amdhsa_system_sgpr_workgroup_id_x 1
  .amdhsa_float_denorm_mode_32 3
  .amdhsa_float_denorm_mode_16_64 3
.end_amdhsa_kernel"""

HEADER = open('standalone__gqa_block_cached__sampling.s.ref').read().split('; Override launch')[0]
def build(path):
    L.clear(); uid[0]=0
    K1="standalone__gqa_block_cached__sampling_kernel"; K2="gqa_reduce_kernel"
    main_kernel(K1)
    reduce_kernel(K2)
    out = HEADER + f"; @launch kernel={K1} grid=(256,1,1) block=(256,1,1) lds=163840\n"
    out += f"; @launch kernel={K2} grid=(1152,1,1) block=(64,1,1) lds=0\n"
    out += '.amdgcn_target "amdgcn-amd-amdhsa--gfx950"\n.text\n' + "\n".join(L) + "\n"
    out += '.section .rodata,"a"\n' + desc(K1,512,256,96) + "\n" + desc(K2,72,72,32) + "\n"
    open(path,'w').write(out)

if __name__=='__main__':
    path = sys.argv[1]
    for a in sys.argv[2:]:
        k,v = a.split('=',1); setattr(opt,k,v)
    build(path)
```

```python
import sys, math, struct

class Opt:
    kv_flags = "nt"
    part_flags = ""
    red_flags = ""
    stamps = None
    fine = None
    thr = 8.0
    N = 6
    dbgout = None
opt = Opt()

L = []
def A(s): L.append("    " + s)
def LBL(s): L.append(s + ":")
def f2u(x): return struct.unpack('<I', struct.pack('<f', x))[0]
SCALE = math.log2(math.e) / math.sqrt(128.0)

sK, sV, sWQ, sWO, sX, sWS = 4, 8, 12, 16, 20, 24
def srd(b): return f"s[{b}:{b+3}]"
sW=28; sT=29; sSlot=30; sRB=31; sRE=32; sKoff=33; sVoff=34; sT0=35; sT1=36; sC=37; sSS=38
sWqOff=39; sXoff=40; sWoOff=41; sMConsW=42; sMXrd=43; sMIssWq=44; sMIssVo=45; sMSide=46; sP=47
sFree=48; sBw=49; sBp=50; sSSp=51; sT2=52; sT3=53; sWxOff=54; sMSpec=55; sTail=56; sFirst=57; sThr=58
vL16=1; vKd=[2,3,4,5]; vVd=6; vWqd=7; vWod=8; vWxd=9; vXr=10; vKr=11; vVr=12; vWr=13; vWrX=14
vMs=[15,16]; vL8=17
vLs=[18,20]
vAl=[22,24]
vMf=[26,27]
vX0=28; vX1=29; vD0=30; vD1=31
vT=32
vX=[48,64]
vY=[80,96]
vP=[112,120]
vO=128
def Oreg(t,qt): return vO+32*t+16*qt
aQ=0; aKF=64; aVF=96; aPm=128; aPx=192; aXF=224
def vr(b,n): return f"v[{b}:{b+n-1}]"
def ar(b,n): return f"a[{b}:{b+n-1}]"
AUX=131072
MFMA="v_mfma_f32_32x32x16_bf16"
uid=[0]
def newlbl(p):
    uid[0]+=1; return f"L_{p}_{uid[0]}"

def stamp(idx, reg=0, plusT=False):
    if not opt.stamps: return
    A("s_memrealtime s[84:85]")
    if plusT: A(f"s_add_u32 m0, s{sT}, {idx}")
    else: A(f"s_mov_b32 m0, {idx}")
    A("s_waitcnt lgkmcnt(0)")
    A(f"v_writelane_b32 v{reg}, s84, m0")
def cyc(idx, reg=0):
    if not opt.stamps: return
    A("s_memtime s[84:85]"); A(f"s_mov_b32 m0, {idx}"); A("s_waitcnt lgkmcnt(0)"); A(f"v_writelane_b32 v{reg}, s84, m0")
def fine(idx):
    if not opt.fine: return
    l=newlbl("f")
    A(f"s_cmp_lg_u32 s{sT}, {opt.fine}")
    A(f"s_cbranch_scc1 {l}")
    cyc(idx, 25)
    LBL(l)
def stamp_out():
    if opt.dbgout:
        l=newlbl("dbg"); l2=newlbl("dbg")
        A("s_add_u32 s76, s70, 0x4000000"); A("s_addc_u32 s77, s71, 0"); A("s_mov_b32 s78, 256"); A("s_mov_b32 s79, 0x20000")
        A(f"s_cmp_lg_u32 s{sW}, 0"); A(f"s_cbranch_scc1 {l}")
        A("s_waitcnt lgkmcnt(0)")
        A("s_getreg_b32 s80, hwreg(HW_REG_XCC_ID)"); A("s_add_u32 s80, s80, 100")
        A("s_lshr_b32 s81, s2, 3"); A("s_lshl_b32 s81, s81, 1"); A("s_and_b32 s82, s2, 7"); A("s_add_u32 s81, s81, s82")
        A("s_cmp_gt_u32 s82, 1"); A(f"s_cbranch_scc1 {l2}"); A("s_cmp_gt_u32 s81, 5"); A(f"s_cbranch_scc1 {l2}")
        A("s_lshl_b32 s81, s81, 2"); A("s_add_u32 s81, s81, 40"); A(f"v_mov_b32 v{vT}, s80"); A(f"v_mov_b32 v{vT+1}, 0")
        A(f"buffer_store_dword v{vT}, v{vT+1}, s[76:79], s81 offen")
        LBL(l2)
        A("s_cmp_lg_u32 s2, 0"); A(f"s_cbranch_scc1 {l}")
        A("v_readlane_b32 s80, v0, 0"); A("v_readlane_b32 s81, v0, 2")
        for k,(reg,lane,cy) in enumerate(((0,62,0),(0,3,1),(23,40,0),(0,1,0),(0,8,0),(0,40,0),(0,41,0),(0,56,0),(0,57,0),(0,60,0))):
            A(f"v_readlane_b32 s82, v{reg}, {lane}"); A("s_nop 3"); A(f"s_sub_u32 s82, s82, s{81 if cy else 80}")
            A(f"v_mov_b32 v{vT}, s82"); A(f"v_mov_b32 v{vT+1}, 0"); A(f"buffer_store_dword v{vT}, v{vT+1}, s[76:79], 0 offen offset:{4*k}")
        LBL(l)
        return
    A("s_lshl_b32 s80, s2, 2"); A(f"s_add_u32 s80, s80, s{sW}"); A("s_mul_i32 s80, s80, 768")
    A("s_add_u32 s80, s80, 0x4000000")
    A("s_add_u32 s76, s70, s80"); A("s_addc_u32 s77, s71, 0"); A("s_mov_b32 s78, 768"); A("s_mov_b32 s79, 0x20000")
    A(f"v_lshrrev_b32 v{vT}, 2, v{vL16}")
    A(f"buffer_store_dword v0, v{vT}, s[76:79], 0 offen")
    A(f"buffer_store_dword v23, v{vT}, s[76:79], 0 offen offset:256")
    A(f"buffer_store_dword v25, v{vT}, s[76:79], 0 offen offset:512")

def emit(lst):
    for x in lst:
        if x.endswith(":"): L.append(x)
        else: A(x)
def I_kv(kind, slot, soff):
    s = sK if kind=='K' else sV
    r=[f"s_mov_b32 m0, s{slot}", f"s_add_u32 s{sT0}, s{soff}, 4096"]
    for n in range(4):
        v = vKd[n] if kind=='K' else vVd
        r.append(f"buffer_load_dwordx4 v{v}, {srd(s)}, s{soff} offen offset:{n*1024} {opt.kv_flags} lds")
    r += [f"s_add_u32 m0, s{slot}, 4096", f"s_add_u32 s{soff}, s{soff}, 32768"]
    for n in range(4):
        v = vKd[n] if kind=='K' else vVd
        r.append(f"buffer_load_dwordx4 v{v}, {srd(s)}, s{sT0} offen offset:{n*1024} {opt.kv_flags} lds")
    return r
def I_kvt(kind, slot, soff):
    r=[]
    for x in I_kv(kind, slot, soff):
        if x.startswith("buffer_") and int(opt.N)>0: r.append(f"s_waitcnt vmcnt({int(opt.N)-1}) ")
        r.append(x)
    return r
def merge_even(a, b):
    groups=[]; cur=[]
    for x in a:
        cur.append(x)
        if x.startswith("buffer_"): groups.append(cur); cur=[]
    if cur: groups[-1]+=cur
    tot=sum(cost(x) for x in b); out=[]; acc=0; g=0
    for i,x in enumerate(b):
        while g<len(groups) and acc>=tot*g/len(groups) and not (out and glued(out[-1])):
            out+=groups[g]; g+=1
        out.append(x); acc+=cost(x)
    while g<len(groups): out+=groups[g]; g+=1
    return out
def I_unit(s, vd, slot, soff, step, adv, n_instr=8):
    r=[]
    for n in range(n_instr):
        if n==0: r.append(f"s_mov_b32 m0, s{slot}")
        if n==4: r.append(f"s_add_u32 m0, s{slot}, 4096")
        r.append(f"s_add_u32 s{sT0}, s{soff}, {n*step-(n&3)*1024}")
        v = vd[n&3] if isinstance(vd,list) else vd
        r.append(f"buffer_load_dwordx4 v{v}, {srd(s)}, s{sT0} offen offset:{(n&3)*1024} lds")
    if adv: r.append(f"s_add_u32 s{soff}, s{soff}, {adv}")
    return r
def I_wq(slot): return I_unit(sWQ, vWqd, slot, sWqOff, 8*8192, 64*8192)
def I_wo(slot): return I_unit(sWO, vWod, slot, sWoOff, 4*1152, 32*1152)
def I_wx(slot): return I_unit(sWO, vWxd, slot, sWxOff, 8*1152, 256*1152)
def I_adv():
    return [f"s_add_u32 s{sSlot}, s{sSlot}, 8192", f"s_cmp_ge_u32 s{sSlot}, s{sRE}", f"s_cselect_b32 s{sSlot}, s{sRB}, s{sSlot}"]
def I_rdW(slot, vbase, dst):
    r=[f"v_add_u32 v{vT}, s{slot}, v{vbase}", f"v_xor_b32 v{vT+1}, 64, v{vT}"]
    for u in range(4):
        for tau in range(2):
            for w2 in range(2):
                r.append(f"ds_read_b64_tr_b16 {ar(dst+4*(u*2+tau)+2*w2,2)}, v{vT+tau} offset:{u*2048+w2*512}")
    return r
def I_mmW(src, xf, first=False):
    r=[]
    for u in range(4):
        for tau in range(2):
            c = "0" if (first and u==0) else ar(aPx+16*tau,16)
            r.append(f"{MFMA} {ar(aPx+16*tau,16)}, {ar(src+4*(u*2+tau),4)}, {xf(u)}, {c}")
    return r
def I_rdV(slot, dst):
    r=[f"v_add_u32 v{vT}, s{slot}, v{vVr}"]
    for t in range(1,4): r.append(f"v_xor_b32 v{vT+t}, {64*t}, v{vT}")
    for u in range(2):
        for t in range(4):
            for w2 in range(2):
                r.append(f"ds_read_b64_tr_b16 {ar(dst+8*t+4*u+2*w2,2)}, v{vT+t} offset:{u*4096+w2*1024}")
    return r
def I_rdK(slot, dst):
    r=[f"v_add_u32 v{vT+8}, s{slot}, v{vKr}", f"ds_read_b128 {ar(dst,4)}, v{vT+8}"]
    for s in range(1,8):
        r.append(f"v_xor_b32 v{vT+8+s}, {32*s}, v{vT+8}")
        r.append(f"ds_read_b128 {ar(dst+4*s,4)}, v{vT+8+s}")
    return r
def I_rdOF(preg):
    return [f"s_and_b32 s{sT0}, s{preg}, 3", f"s_xor_b32 s{sT0}, s{sT0}, 1", f"s_lshl_b32 s{sT0}, s{sT0}, 13",
            f"s_lshr_b32 s{sT1}, s{preg}, 2", f"s_lshl_b32 s{sT1}, s{sT1}, 11", f"s_add_u32 s{sT0}, s{sT0}, s{sT1}",
            f"s_add_u32 s{sT0}, s{sT0}, {AUX}", f"v_add_u32 v{vT+4}, s{sT0}, v{vL16}",
            f"ds_read_b128 {ar(aXF,4)}, v{vT+4}", f"ds_read_b128 {ar(aXF+4,4)}, v{vT+4} offset:1024"]
def I_mmO(src):
    return [f"{MFMA} {ar(aPm+16*t,16)}, {ar(src+8*t+4*u,4)}, {ar(aXF+4*u,4)}, {ar(aPm+16*t,16)}" for u in range(2) for t in range(4)]
def I_rdXFx():
    return [f"s_lshl_b32 s{sT0}, s{sW}, 1", f"s_and_b32 s{sT0}, s{sT0}, 3", f"s_lshl_b32 s{sT0}, s{sT0}, 13",
            f"s_lshr_b32 s{sT1}, s{sW}, 1", f"s_lshl_b32 s{sT1}, s{sT1}, 11", f"s_add_u32 s{sT0}, s{sT0}, s{sT1}",
            f"s_add_u32 s{sT0}, s{sT0}, {AUX}", f"v_add_u32 v{vT+4}, s{sT0}, v{vL16}",
            f"ds_read_b128 {ar(aXF,4)}, v{vT+4} offset:8192", f"ds_read_b128 {ar(aXF+4,4)}, v{vT+4} offset:{8192+1024}",
            f"ds_read_b128 {ar(aXF+8,4)}, v{vT+4}", f"ds_read_b128 {ar(aXF+12,4)}, v{vT+4} offset:1024"]
def I_qfrags(dst):
    return [f"v_accvgpr_read_b32 v{dst+i}, a{aPx+i}" for i in range(32)] + \
           [f"v_cvt_pk_bf16_f32 v{dst+i}, v{dst+2*i}, v{dst+2*i+1}" for i in range(16)]
def I_wait_side(n=16):
    l1=newlbl("w")
    return [f"s_bitcmp1_b32 s{sMSide}, s{sT}\n    s_cbranch_scc1 {l1}\n    s_waitcnt vmcnt({n})\n{l1}:\n    s_waitcnt vmcnt({n+8}) ; WS"]
def fix_ws(lst, base):
    k=0; out=[]
    for x in lst:
        if x.endswith("; WS"): x=I_wait_side(base+k)[0]
        if x.startswith("buffer_"): k+=1
        out.append(x)
    return out
def I_qk():
    r=[]
    for qt in range(2):
        for s in range(8):
            c = "0" if s==0 else vr(vX[qt],16)
            r.append(f"{MFMA} {vr(vX[qt],16)}, {ar(aKF+4*s,4)}, {ar(aQ+32*qt+4*s,4)}, {c}")
    return r
def I_fma(qt): return [f"v_fma_f32 v{vY[qt]+i}, v{vX[qt]+i}, s{sC}, -v{vMs[qt]}" for i in range(16)]
def I_pv():
    return [f"{MFMA} {vr(Oreg(t,qt),16)}, {ar(aVF+8*t+4*u,4)}, {vr(vP[qt]+4*u,4)}, {vr(Oreg(t,qt),16)}"
            for u in range(2) for t in range(4) for qt in range(2)]
def I_expsum():
    r=[]; pend=[]
    for qt in range(2):
        for j in range(8):
            y=vY[qt]+2*j
            r += [f"v_exp_f32 v{y}, v{y}", f"v_exp_f32 v{y+1}, v{y+1}"]
            r += pend
            pend=[f"v_pk_add_f32 {vr(vLs[qt],2)}, {vr(vLs[qt],2)}, {vr(y,2)}", f"v_cvt_pk_bf16_f32 v{vP[qt]+j}, v{y}, v{y+1}"]
    return r, pend
def cost(x):
    if x.endswith(":"): return 0
    if x.endswith("; WS"): return 12
    if x.startswith("v_exp"): return 8
    if x.startswith("buffer_"): return 12
    if x.startswith("ds_"): return 6
    if x.startswith("v_pk") or x.startswith("v_cvt"): return 5
    return 4
def weave(mf, fill):
    tot=sum(cost(x) for x in fill); out=[]; i=0; acc=0
    for k,m in enumerate(mf):
        out.append(m)
        tgt=tot*(k+1)/len(mf)
        while i<len(fill) and (acc+cost(fill[i])/2<=tgt or k==len(mf)-1 or fill[i].endswith(":") or (i>0 and glued(fill[i-1]))):
            out.append(fill[i]); acc+=cost(fill[i]); i+=1
    return out
def glued(x):
    return x.startswith("s_cmp")

def main_kernel(name):
    L.append(f".globl {name}\n.p2align 8\n.type {name},@function")
    LBL(name)
    A("s_cmp_ge_u32 s2, 256")
    A("s_cbranch_scc1 L_done")
    A("s_load_dwordx8 s[60:67], s[0:1], 0")
    A("s_load_dwordx2 s[68:69], s[0:1], 32")
    A("s_load_dwordx2 s[70:71], s[0:1], 56")
    A("v_lshrrev_b32 v32, 6, v0")
    A("v_and_b32 v31, 63, v0")
    A(f"v_readfirstlane_b32 s{sW}, v32")
    A("v_lshrrev_b32 v33, 4, v31")
    A("v_and_b32 v34, 15, v31")
    A("v_xor_b32 v35, v34, v33")
    A("v_lshlrev_b32 v35, 4, v35")
    A(f"v_lshl_add_u32 v{vKd[0]}, v33, 8, v35")
    A("v_mul_u32_u24 v36, 1152, v33")
    for n in range(4):
        A(f"v_xor_b32 v{44+n}, {64*n}, v35")
        A(f"v_add_u32 v{44+n}, v36, v{44+n}")
    A("v_lshrrev_b32 v38, 3, v31")
    A("v_and_b32 v37, 1, v33")
    A("v_lshlrev_b32 v37, 2, v37")
    A("v_and_b32 v39, 7, v31")
    A("v_xor_b32 v37, v37, v39")
    A("v_lshlrev_b32 v37, 4, v37")
    A(f"v_lshl_add_u32 v{vWqd}, v38, 13, v37")
    A("v_mul_u32_u24 v38, 1152, v38")
    A(f"v_add_u32 v{vWxd}, v38, v37")
    for n in range(1,4): A(f"v_xor_b32 v{vKd[n]}, {64*n}, v{vKd[0]}")
    A(f"s_lshl_b32 s{sRB}, s{sW}, 15")
    A(f"s_add_u32 s{sRE}, s{sRB}, 24576")
    A(f"s_mov_b32 s{sSS}, s{sRE}")
    A(f"s_lshl_b32 s{sBw}, s{sW}, 13")
    A(f"s_add_u32 s{sBw}, s{sBw}, {AUX}")
    A(f"s_lshl_b32 s{sKoff}, s{sW}, 13")
    A(f"s_mov_b32 s{sVoff}, s{sKoff}")
    A(f"s_and_b32 s{sT2}, s2, 7")
    A(f"s_lshr_b32 s{sT3}, s2, 3")
    A(f"s_lshl_b32 s{sWqOff}, s{sT2}, 10")
    A(f"s_lshl_b32 s{sT0}, s{sW}, 7")
    A(f"s_add_u32 s{sWqOff}, s{sWqOff}, s{sT0}")
    A(f"s_mul_i32 s{sXoff}, s{sT3}, 36864")
    A(f"s_add_u32 s{sTail}, s{sXoff}, 1024")
    A(f"s_lshl_b32 s{sT0}, s{sW}, 8")
    A(f"s_add_u32 s{sXoff}, s{sXoff}, s{sT0}")
    A(f"s_mul_i32 s{sWoOff}, s{sT2}, {512*1152}")
    A(f"s_mul_i32 s{sT1}, s{sW}, {64*1152}")
    A(f"s_add_u32 s{sWxOff}, s{sWoOff}, s{sT1}")
    A(f"s_add_u32 s{sWxOff}, s{sWxOff}, 1024")
    A(f"s_add_u32 s{sWoOff}, s{sWoOff}, s{sT0}")
    A("s_lshl_b32 s72, s2, 20")
    A("s_lshr_b32 s73, s2, 12")
    A("s_mul_i32 s74, s2, 73728")
    A(f"s_lshl_b32 s{sT1}, s{sT3}, 2")
    A(f"s_add_u32 s{sT1}, s{sT1}, s{sW}")
    A(f"s_mul_i32 s{sT1}, s{sT1}, 36")
    A(f"v_add_u32 v40, s{sT1}, v31")
    A(f"s_lshl_b32 s{sT1}, s{sT2}, 10")
    A("v_lshrrev_b32 v41, 3, v40")
    A("v_and_b32 v42, 7, v40")
    A("v_lshlrev_b32 v42, 7, v42")
    A("v_lshl_add_u32 v41, v41, 13, v42")
    A(f"v_add_u32 v41, s{sT1}, v41")
    A(f"s_mul_i32 s{sT1}, s{sT2}, 589824")
    A("v_lshlrev_b32 v40, 7, v40")
    A(f"v_add_u32 v40, s{sT1}, v40")
    A("v_cmp_gt_u32 vcc, 36, v31")
    A("v_mov_b32 v42, 0x7f000000")
    A("s_nop 0")
    R1=sT2; R2=sT3
    A(f"v_cndmask_b32 v{vX0}, v42, v41, vcc")
    A(f"v_cndmask_b32 v{vX1}, v42, v40, vcc")
    A(f"s_add_u32 s{R1}, s{sRB}, 8192")
    A(f"s_add_u32 s{R2}, s{sRB}, 16384")
    def mk(s, lo, hi, size=0, add=None):
        if add:
            A(f"s_add_u32 s{s}, s{lo}, s{add[0]}")
            A(f"s_addc_u32 s{s+1}, s{hi}, {add[1]}")
        else:
            A(f"s_mov_b32 s{s}, s{lo}"); A(f"s_mov_b32 s{s+1}, s{hi}")
    for s,size in ((sWQ,576*8192),(sX,32*36864),(sK,1<<20),(sV,1<<20),(sWO,4096*1152),(sWS,73728)):
        A(f"s_mov_b32 s{s+2}, {size}"); A(f"s_mov_b32 s{s+3}, 0x20000")
    A("s_waitcnt lgkmcnt(0)")
    mk(sX,60,61); mk(sK,62,63,0,(72,"s73")); mk(sWQ,66,67)
    stamp(0); cyc(2)
    A(f"buffer_load_dword v{vD0}, v{vX0}, {srd(sWQ)}, 0 offen")
    emit(I_unit(sX,[44,45,46,47],sBw,sXoff,4*1152,0))
    emit(I_unit(sX,vWxd,sSS,sTail,8*1152,0,4))
    emit(I_kv('K', sRB, sKoff))
    emit(I_wq(R1)); emit(I_wq(R2))
    mk(sV,64,65,0,(72,"s73")); mk(sWO,68,69); mk(sWS,70,71,0,(74,"0"))
    A(f"v_lshlrev_b32 v{vL16}, 4, v31")
    A(f"v_lshlrev_b32 v{vL8}, 3, v31")
    A("v_lshlrev_b32 v35, 2, v33")
    A("v_xor_b32 v35, v34, v35")
    A("v_lshlrev_b32 v35, 4, v35")
    A(f"v_lshl_add_u32 v{vVd}, v33, 8, v35")
    A(f"v_add_u32 v{vWod}, v36, v35")
    A("v_and_b32 v36, 31, v31")
    A("v_lshrrev_b32 v37, 5, v31")
    A("v_and_b32 v39, 15, v36")
    A("v_xor_b32 v39, v39, v37")
    A("v_lshlrev_b32 v39, 4, v39")
    A(f"v_lshl_add_u32 v{vXr}, v36, 8, v39")
    A(f"v_add_u32 v{vXr}, {AUX}, v{vXr}")
    A("v_and_b32 v39, 2, v36")
    A("v_lshl_or_b32 v39, v39, 1, v37")
    A("v_lshlrev_b32 v39, 4, v39")
    A("v_lshl_add_u32 v43, v36, 7, v39")
    A(f"v_add_u32 v43, s{sSS}, v43")
    A("v_and_b32 v38, 0x13, v36")
    A("v_and_b32 v39, 4, v36")
    A("v_lshl_or_b32 v38, v39, 1, v38")
    A("v_and_b32 v39, 8, v36")
    A("v_lshrrev_b32 v39, 1, v39")
    A("v_or_b32 v38, v38, v39")
    A("v_and_b32 v39, 15, v38")
    A("v_xor_b32 v39, v39, v37")
    A("v_lshlrev_b32 v39, 4, v39")
    A(f"v_lshl_add_u32 v{vKr}, v38, 8, v39")
    A("v_bfe_u32 v38, v31, 2, 2")
    A("v_lshl_add_u32 v39, v37, 3, v38")
    A("v_and_b32 v40, 1, v33")
    A("v_lshlrev_b32 v40, 5, v40")
    A("v_and_b32 v41, 1, v31")
    A("v_lshl_or_b32 v40, v41, 4, v40")
    A("v_and_b32 v41, 2, v31")
    A("v_lshl_or_b32 v40, v41, 2, v40")
    A(f"v_xor_b32 v41, s{sW}, v38")
    A("v_lshl_or_b32 v41, v41, 6, v40")
    A(f"v_lshl_add_u32 v{vVr}, v39, 8, v41")
    A("v_lshrrev_b32 v41, 1, v38")
    A("v_lshl_or_b32 v41, v41, 6, v40")
    A(f"v_lshl_add_u32 v{vWr}, v39, 7, v41")
    A(f"s_lshl_b32 s{sT0}, s{sW}, 5")
    A(f"v_xor_b32 v{vWrX}, s{sT0}, v{vWr}")
    A(f"s_xor_b32 s{sSSp}, s{sSS}, 32768")
    A(f"s_xor_b32 s{sBp}, s{sBw}, 8192")
    A(f"s_mov_b32 s{sC}, 0x{f2u(SCALE):08x}")
    A(f"s_mov_b32 s{sThr}, 0x{f2u(float(opt.thr)):08x}")
    A(f"s_mov_b32 s{sMConsW}, 0x000101ff")
    A(f"s_mov_b32 s{sMXrd}, 0x000001fe")
    A(f"s_mov_b32 s{sMIssWq}, 0x000000ff")
    A(f"s_mov_b32 s{sMIssVo}, 0x00ff0000")
    A(f"s_mov_b32 s{sMSide}, 0x01ff01ff")
    A(f"s_mov_b32 s{sMSpec}, 0x{(1<<9)|(1<<10)|(1<<14)|(1<<25)|(1<<30):08x}")
    A(f"s_mov_b32 s{sFree}, s{R2}")
    A(f"s_mov_b32 s{sP}, 0")
    A(f"s_mov_b32 s{sT}, 0")
    A(f"s_mov_b32 s{sSlot}, s{sRB}")
    A(f"v_mov_b32 v{vMs[0]}, 0"); A(f"v_mov_b32 v{vMs[1]}, 0")
    for u in range(1,4): A(f"v_xor_b32 v{43 - u}, {32*u}, v43")
    A("s_waitcnt vmcnt(24)")
    stamp(40,23)
    for u in range(4): A(f"ds_read_b128 {ar(aXF+4*u,4)}, v{43-u}")
    A("s_waitcnt lgkmcnt(0)")
    emit(I_wq(sSS))
    A("s_barrier")
    A("s_waitcnt vmcnt(24)")
    emit(I_rdK(sRB, aKF))
    A("s_waitcnt lgkmcnt(0)")
    emit(I_kv('K', sRB, sKoff))
    slots=[R1,R2,sSS]
    def piece(p, n, nxt):
        A(f"s_waitcnt vmcnt({n})")
        stamp(41+p,23)
        emit(I_rdW(slots[p%3], vWr, aPm))
        if p<8:
            for u in range(4):
                A(f"v_xor_b32 v{vT+2+u}, {128*(p&1)+32*u}, v{vXr}")
                A(f"ds_read_b128 {vr(vX[0]+4*u,4)}, v{vT+2+u} offset:{(p>>1)*8192}")
            xf=lambda u: vr(vX[0]+4*u,4)
        else: xf=lambda u: ar(aXF+4*u,4)
        A("s_waitcnt lgkmcnt(0)")
        emit(weave(I_mmW(aPm, xf, first=(p==0)), nxt) if nxt else I_mmW(aPm, xf))
    for p in range(3): piece(p, 24, I_wq(slots[p]))
    A("s_waitcnt vmcnt(24)")
    emit(I_rdK(sRB, aVF))
    A("s_waitcnt lgkmcnt(0)")
    emit(I_kv('V', sRB, sVoff))
    for p in range(3,6): piece(p, 24, I_wq(slots[p%3]))
    piece(6, 16, I_kv('K', R1, sKoff))
    piece(7, 16, [])
    piece(8, 8, [])
    A(f"buffer_load_dword v{vD0}, v{vX1}, {srd(sWO)}, 0 offen")
    A(f"s_sub_u32 s{sWqOff}, s{sWqOff}, {64*8192-512}")
    A(f"v_add_u32 v{vT}, s{sSS}, v{vL16}")
    A(f"v_add_u32 v{vT+1}, 24576, v{vL16}")
    A(f"v_add_u32 v{vT+2}, {24576+65536}, v{vL16}")
    A("s_nop 7")
    emit(I_qfrags(vY[0]))
    for f in range(4): A(f"ds_write_b128 v{vT}, {vr(vY[0]+4*f,4)} offset:{f*1024}")
    for i in range(32): A(f"v_accvgpr_write_b32 a{aPx+i}, 0")
    A("s_waitcnt lgkmcnt(0)")
    A("s_barrier")
    for f in range(16): A(f"ds_read_b128 {ar(aQ+4*f,4)}, v{vT+1+(f>>3)} offset:{((f>>2)&1)*32768+(f&3)*1024}")
    A("s_waitcnt lgkmcnt(0)")
    stamp(1)
    qk=I_qk()
    emit(qk[:12])
    emit(weave(qk[12:], ["s_nop 7"]+I_fma(0)))
    A("s_barrier")
    emit(I_wq(sSS))
    A(f"s_sub_u32 s{sWqOff}, s{sWqOff}, {576*8192}")
    for i in range(32): A(f"v_accvgpr_mov_b32 a{aKF+i}, a{aVF+i}")
    emit(I_fma(1))
    A(f"s_mov_b32 s{sFirst}, 1")
    A("s_branch L_rare")
    ex, ex_tail = I_expsum()
    qk=I_qk()
    L.append(".p2align 6")
    LBL("L_loop")
    A("s_waitcnt lgkmcnt(0)")
    fine(0)
    emit(weave(qk, merge_even(I_kvt('V', sFree, sVoff), ex)))
    emit(ex_tail)
    fine(1)
    emit(I_wait_side())
    stamp(0,23,True)
    fine(2)
    emit(I_rdV(sSlot, aVF))
    emit(I_fma(0))
    pv=I_pv()
    f1=I_fma(1)
    for k in range(4):
        if k%2==0: A(f"s_waitcnt lgkmcnt({14-k})")
        A(pv[k]); emit(f1[4*k:4*k+4])
    A("s_waitcnt lgkmcnt(0)")
    fine(3)
    mx=[]
    allY=[vY[0]+i for i in range(16)]+[vY[1]+i for i in range(16)]
    mx.append(f"v_max3_f32 v{vX0}, v{allY[0]}, v{allY[1]}, v{allY[2]}")
    mx.append(f"v_max3_f32 v{vX1}, v{allY[16]}, v{allY[17]}, v{allY[18]}")
    for i in range(6):
        mx.append(f"v_max3_f32 v{vX0}, v{vX0}, v{allY[3+2*i]}, v{allY[4+2*i]}")
        mx.append(f"v_max3_f32 v{vX1}, v{vX1}, v{allY[19+2*i]}, v{allY[20+2*i]}")
    mx.append(f"v_max3_f32 v{vX0}, v{vX0}, v{allY[15]}, v{allY[31]}")
    mx.append(f"v_max_f32 v{vX0}, v{vX0}, v{vX1}")
    mx.append(f"v_cmp_lt_f32 vcc, s{sThr}, v{vX0}")
    rest = [f"s_mov_b32 s{sT2}, s{sSlot}"] + I_adv() + mx[:14] + I_wait_side() + [f"s_mov_b32 s{sFree}, s{sSlot}"] + I_rdK(sSlot, aKF) + I_adv() + mx[14:]
    fill = fix_ws(rest[:1] + merge_even(I_kvt('K', sT2, sKoff), rest[1:]), 8)
    emit(weave(pv[4:], fill))
    fine(4)
    stamp(8,0,True)
    A(f"s_and_b32 s{sT1}, s{sT}, 15")
    A(f"s_cmp_eq_u32 s{sT1}, 15")
    A("s_cbranch_scc1 L_combine")
    A("s_cbranch_vccnz L_rare")
    LBL("L_rare_ret")
    A(f"s_bitcmp1_b32 s{sMSide}, s{sT}")
    A("s_cbranch_scc0 L_noside")
    A("s_waitcnt vmcnt(16)")
    fine(5)
    A(f"s_bitcmp1_b32 s{sMConsW}, s{sT}")
    A("s_cbranch_scc0 L_consV")
    emit(I_rdW(sSS, vWr, aVF))
    A(f"s_bitcmp1_b32 s{sMXrd}, s{sT}")
    A("s_cbranch_scc0 L_noxrd")
    A(f"s_and_b32 s{sT0}, s{sP}, 1"); A(f"s_lshl_b32 s{sT0}, s{sT0}, 7")
    A(f"s_lshr_b32 s{sT1}, s{sP}, 1"); A(f"s_lshl_b32 s{sT1}, s{sT1}, 13")
    A(f"v_xor_b32 v{vT+2}, s{sT0}, v{vXr}")
    A(f"v_add_u32 v{vT+2}, s{sT1}, v{vT+2}")
    A(f"s_add_u32 s{sP}, s{sP}, 1")
    A(f"ds_read_b128 {ar(aXF,4)}, v{vT+2}")
    for u in range(1,4):
        A(f"v_xor_b32 v{vT+2+u}, {32*u}, v{vT+2}")
        A(f"ds_read_b128 {ar(aXF+4*u,4)}, v{vT+2+u}")
    LBL("L_noxrd")
    A("s_waitcnt lgkmcnt(0)")
    emit(I_mmW(aVF, lambda u: ar(aXF+4*u,4)))
    A("s_branch L_issue")
    LBL("L_consV")
    emit(I_rdV(sSS, aVF))
    emit(I_rdOF(sP))
    A(f"s_add_u32 s{sP}, s{sP}, 1")
    A("s_waitcnt lgkmcnt(0)")
    emit(I_mmO(aVF))
    LBL("L_issue")
    fine(6)
    A(f"s_bitcmp1_b32 s{sMIssWq}, s{sT}")
    A("s_cbranch_scc0 L_issVo")
    emit(I_wq(sSS))
    A("s_branch L_noside")
    LBL("L_issVo")
    A(f"s_bitcmp1_b32 s{sMIssVo}, s{sT}")
    A("s_cbranch_scc0 L_noside")
    emit(I_wo(sSS))
    LBL("L_noside")
    fine(7)
    A(f"s_bitcmp1_b32 s{sMSpec}, s{sT}")
    A("s_cbranch_scc1 L_special")
    LBL("L_spec_ret")
    A(f"s_add_u32 s{sT}, s{sT}, 1")
    A("s_branch L_loop")
    LBL("L_special")
    A(f"s_and_b32 s{sT1}, s{sT}, 15")
    A(f"s_cmp_eq_u32 s{sT1}, 14")
    A("s_cbranch_scc1 L_sp14")
    A("s_waitcnt lgkmcnt(0)")
    A("s_barrier")
    A(f"s_cmp_lg_u32 s{sT}, 9")
    A("s_cbranch_scc1 L_spec_ret")
    emit(I_qfrags(vX[0]))
    A(f"v_add_u32 v{vT}, s{sBw}, v{vL16}")
    for f in range(4): A(f"ds_write_b128 v{vT}, {vr(vX[0]+4*f,4)} offset:{f*1024}")
    A("s_branch L_spec_ret")
    LBL("L_sp14")
    for qt in range(2):
        A(f"v_mov_b32 v{vMf[qt]}, v{vMs[qt]}"); A(f"v_mov_b32 v{vMs[qt]}, 0")
    A(f"s_cmp_lg_u32 s{sT}, 14")
    A("s_cbranch_scc1 L_spec_ret")
    A(f"v_add_u32 v{vT}, {AUX}, v{vL16}")
    for f in range(16): A(f"ds_read_b128 {ar(aQ+4*f,4)}, v{vT} offset:{(f>>2)*8192+(f&3)*1024}")
    A("s_waitcnt lgkmcnt(0)")
    A("s_barrier")
    A("s_branch L_spec_ret")
    LBL("L_rare")
    for qt,d in ((0,vX0),(1,vX1)): A(f"v_max3_f32 v{d}, v{vY[qt]}, v{vY[qt]+1}, v{vY[qt]+2}")
    for i in range(6):
        for qt,d in ((0,vX0),(1,vX1)): A(f"v_max3_f32 v{d}, v{d}, v{vY[qt]+3+2*i}, v{vY[qt]+4+2*i}")
    for qt,d in ((0,vX0),(1,vX1)): A(f"v_max_f32 v{d}, v{d}, v{vY[qt]+15}")
    A("s_nop 1")
    A(f"v_permlane32_swap_b32 v{vX0}, v{vX1}")
    A(f"v_max_f32 v{vX0}, v{vX0}, v{vX1}")
    A(f"s_cmp_lg_u32 s{sFirst}, 0")
    A("s_cbranch_scc1 L_r1")
    A(f"v_max_f32 v{vX0}, 0, v{vX0}")
    LBL("L_r1")
    A(f"v_mov_b32 v{vX1}, v{vX0}")
    A("s_nop 1")
    A(f"v_permlane32_swap_b32 v{vX0}, v{vX1}")
    for qt,d in ((0,vX0),(1,vX1)): A(f"v_add_f32 v{vMs[qt]}, v{vMs[qt]}, v{d}")
    for i in range(16):
        for qt,d in ((0,vX0),(1,vX1)): A(f"v_sub_f32 v{vY[qt]+i}, v{vY[qt]+i}, v{d}")
    A("s_cbranch_scc1 L_r2")
    for qt,d in ((0,vX0),(1,vX1)): A(f"v_exp_f32 v{vAl[qt]}, -v{d}")
    A("s_nop 0")
    for qt in range(2): A(f"v_pk_mul_f32 {vr(vLs[qt],2)}, {vr(vLs[qt],2)}, {vr(vAl[qt],2)} op_sel_hi:[1,0]")
    for t in range(4):
        for qt in range(2):
            for i in range(0,16,2):
                o=Oreg(t,qt)+i
                A(f"v_pk_mul_f32 {vr(o,2)}, {vr(o,2)}, {vr(vAl[qt],2)} op_sel_hi:[1,0]")
    A("s_branch L_rare_ret")
    LBL("L_r2")
    for i in range(0,128,2): A(f"v_pk_mov_b32 {vr(vO+i,2)}, 0, 0")
    for qt in range(2): A(f"v_pk_mov_b32 {vr(vLs[qt],2)}, 0, 0")
    A(f"s_mov_b32 s{sFirst}, 0")
    A("s_branch L_loop")
    LBL("L_combine")
    A(f"s_add_u32 s{sT}, s{sT}, 1")
    stamp(24,0,True)
    A(f"s_cmp_eq_u32 s{sT}, 32")
    A("s_cbranch_scc0 L_c1")
    A("s_waitcnt vmcnt(0)")
    emit(I_wx(sSlot)); emit(I_adv())
    emit(I_wo(sSlot)); emit(I_adv())
    LBL("L_c1")
    E=vT
    A(f"v_add_f32 v{vLs[0]}, v{vLs[0]}, v{vLs[0]+1}")
    A(f"v_add_f32 v{vLs[1]}, v{vLs[1]}, v{vLs[1]+1}")
    A(f"v_add_u32 v{E}, s{sSS}, v{vL16}")
    A(f"v_add_u32 v{E+1}, s{sBw}, v{vL16}")
    A(f"v_permlane32_swap_b32 v{vMf[0]}, v{vMf[1]}")
    A(f"v_permlane32_swap_b32 v{vLs[0]}, v{vLs[1]}")
    A(f"v_add_u32 v{E+2}, s{sFree}, v{vL8}")
    A(f"v_mov_b32 v{vD0}, v{vMf[0]}")
    A(f"v_add_f32 v{vD1}, v{vLs[0]}, v{vLs[1]}")
    A(f"v_add_u32 v{E+3}, s{sSSp}, v{vL16}")
    A(f"v_add_u32 v{E+4}, s{sBp}, v{vL16}")
    A(f"v_xor_b32 v{E+5}, 32768, v{E+2}")
    A("s_waitcnt lgkmcnt(0)")
    A(f"ds_write_b64 v{E+2}, {vr(vD0,2)}")
    for i in range(8): A(f"ds_write_b128 v{E+1}, {vr(Oreg(3,0)+4*i,4)} offset:{i*1024}")
    for i in range(8): A(f"ds_write_b128 v{E}, {vr(Oreg(1,0)+4*i,4)} offset:{i*1024}")
    A(f"v_add_u32 v{E+6}, s{sBp}, v{vL8}")
    A(f"v_xor_b32 v{E+7}, 65536, v{E+3}")
    A(f"v_xor_b32 v{E+8}, 16384, v{E+6}")
    A("s_waitcnt lgkmcnt(0)")
    A("s_barrier")
    cyc(4) if False else None
    A(f"ds_read_b64 {vr(vMf[0],2)}, v{E+5}")
    for i in range(8): A(f"ds_read_b128 {vr(Oreg(3,0)+4*i,4)}, v{E+4} offset:{i*1024}")
    for i in range(6): A(f"ds_read_b128 {vr(Oreg(1,0)+4*i,4)}, v{E+3} offset:{i*1024}")
    A("s_waitcnt lgkmcnt(14)")
    for i in range(6,8): A(f"ds_read_b128 {vr(Oreg(1,0)+4*i,4)}, v{E+3} offset:{i*1024}")
    def factors(final):
        A(f"v_max_f32 v{vX0}, v{vD0}, v{vMf[0]}")
        A(f"v_sub_f32 v{vD0}, v{vD0}, v{vX0}")
        A(f"v_sub_f32 v{vMf[0]}, v{vMf[0]}, v{vX0}")
        A(f"v_exp_f32 v{vAl[0]}, v{vD0}")
        A(f"v_exp_f32 v{vLs[0]}, v{vMf[0]}")
        A(f"v_mov_b32 v{vD0}, v{vX0}")
        A(f"v_mul_f32 v{vD1}, v{vD1}, v{vAl[0]}")
        A(f"v_fmac_f32 v{vD1}, v{vMf[1]}, v{vLs[0]}")
        if final:
            A(f"v_rcp_f32 v{vX1}, v{vD1}")
            A("s_nop 0")
            A(f"v_mul_f32 v{vAl[0]}, v{vAl[0]}, v{vX1}")
            A(f"v_mul_f32 v{vLs[0]}, v{vLs[0]}, v{vX1}")
        A(f"v_mov_b32 v{vAl[1]}, v{vAl[0]}")
        A(f"v_mov_b32 v{vLs[1]}, v{vLs[0]}")
        A("s_nop 1")
        A(f"v_permlane32_swap_b32 v{vAl[0]}, v{vAl[1]}")
        A(f"v_permlane32_swap_b32 v{vLs[0]}, v{vLs[1]}")
    def scale_own(t):
        for qt in range(2):
            for i in range(0,16,2):
                o=Oreg(t,qt)+i
                A(f"v_pk_mul_f32 {vr(o,2)}, {vr(o,2)}, {vr(vAl[qt],2)} op_sel_hi:[1,0]")
    def add_rcv(t, rt):
        for qt in range(2):
            for i in range(0,16,2):
                o=Oreg(t,qt)+i; r=Oreg(rt,qt)+i
                A(f"v_pk_fma_f32 {vr(o,2)}, {vr(r,2)}, {vr(vLs[qt],2)}, {vr(o,2)} op_sel_hi:[1,0,1]")
    factors(False)
    scale_own(2)
    A("s_waitcnt lgkmcnt(8)")
    add_rcv(2,3)
    A("s_waitcnt lgkmcnt(0)")
    for i in range(8): A(f"ds_write_b128 v{E+3}, {vr(Oreg(2,0)+4*i,4)} offset:{i*1024}")
    A(f"ds_write_b64 v{E+6}, {vr(vD0,2)} offset:4096")
    scale_own(0)
    add_rcv(0,1)
    A("s_waitcnt lgkmcnt(0)")
    A("s_barrier")
    A(f"ds_read_b64 {vr(vMf[0],2)}, v{E+8} offset:4096")
    for i in range(8): A(f"ds_read_b128 {vr(Oreg(1,0)+4*i,4)}, v{E+7} offset:{i*1024}")
    A("s_waitcnt lgkmcnt(8)")
    factors(True)
    scale_own(0)
    A("s_waitcnt lgkmcnt(0)")
    add_rcv(0,1)
    for i in range(16): A(f"v_cvt_pk_bf16_f32 v{Oreg(1,0)+i}, v{Oreg(0,0)+2*i}, v{Oreg(0,0)+2*i+1}")
    for f in range(4): A(f"ds_write_b128 v{E+4}, {vr(Oreg(1,0)+4*f,4)} offset:{f*1024}")
    A(f"s_mov_b32 s{sP}, 0")
    A("s_waitcnt lgkmcnt(0)")
    A("s_barrier")
    stamp(25,0,True)
    emit(I_rdXFx())
    A(f"s_cmp_eq_u32 s{sT}, 32")
    A("s_cbranch_scc1 L_tail")
    emit(I_wx(sSS))
    A(f"v_mov_b32 v{vWr}, v{vWrX}")
    for i in range(96): A(f"v_accvgpr_write_b32 a{aPm+i}, 0")
    A(f"s_mov_b32 s{sFirst}, 2")
    A("s_waitcnt lgkmcnt(0)")
    A("s_branch L_rare")
    LBL("L_tail")
    emit(I_wo(sFree))
    emit(I_wo(sSS))
    order=[]
    emit(I_adv())
    A(f"s_mov_b32 s{sT2}, s{sSlot}")
    emit(I_adv())
    A(f"s_mov_b32 s{sT3}, s{sSlot}")
    ring=[sT3, sFree, sSS, sT2]
    A("s_waitcnt vmcnt(24)")
    emit(I_rdW(sT2, vWr, aKF))
    A("s_waitcnt lgkmcnt(0)")
    emit(weave(I_mmW(aKF, lambda u: ar(aXF+4*u,4)), I_wo(sT2)))
    A(f"v_add_u32 v{vT+4}, {AUX}, v{vL16}")
    for p in range(8):
        A(f"s_waitcnt vmcnt({min(3,7-p)*8})")
        src = aVF if p%2==0 else aKF
        emit(I_rdV(ring[p%4], src))
        off=((p&3)^1)*8192+(p>>2)*2048
        xf = aXF+8*(p&1)
        A(f"ds_read_b128 {ar(xf,4)}, v{vT+4} offset:{off}")
        A(f"ds_read_b128 {ar(xf+4,4)}, v{vT+4} offset:{off+1024}")
        A("s_waitcnt lgkmcnt(0)")
        mm=[f"{MFMA} {ar(aPm+16*t,16)}, {ar(src+8*t+4*u,4)}, {ar(xf+4*u,4)}, {ar(aPm+16*t,16)}" for u in range(2) for t in range(4)]
        emit(weave(mm, I_wo(ring[p%4])) if p<4 else mm)
    stamp(60)
    A(f"v_add_u32 v{vT}, s{sRB}, v{vL16}")
    for i in range(2,8): A(f"ds_write_b128 v{vT}, {ar(aPx+4*i,4)} offset:{i*1024}")
    for i in range(8): A(f"v_accvgpr_read_b32 v{vX[0]+i}, a{aPx+i}")
    for b in range(1,4): A(f"v_xor_b32 v{vT+b}, {b*32768}, v{vT}")
    A(f"s_mul_i32 s{sT1}, s{sW}, 18432")
    A("s_waitcnt lgkmcnt(0)")
    A("s_barrier")
    for b in range(1,4):
        for j in range(2): A(f"ds_read_b128 {vr(vY[0]+8*b+4*j,4)}, v{vT+b} offset:{(2*b+j)*1024}")
    for i in range(16):
        if i%4==0: A(f"s_add_u32 s{sT0}, s{sT1}, {i*1024}")
        A(f"buffer_store_dwordx4 {ar(aPm+4*i,4)}, v{vL16}, {srd(sWS)}, s{sT0} offen offset:{(i&3)*1024} {opt.part_flags}")
    A(f"s_add_u32 s{sT0}, s{sT1}, {16*1024}")
    A("s_waitcnt lgkmcnt(0)")
    for b in range(1,4):
        for i in range(0,8,2): A(f"v_pk_add_f32 {vr(vX[0]+i,2)}, {vr(vX[0]+i,2)}, {vr(vY[0]+8*b+i,2)}")
    for j in range(2):
        A(f"buffer_store_dwordx4 {vr(vX[0]+4*j,4)}, v{vL16}, {srd(sWS)}, s{sT0} offen offset:{j*1024} {opt.part_flags}")
    if opt.stamps:
        stamp(61); A("s_waitcnt vmcnt(0)"); stamp(62); cyc(3); stamp_out()
    LBL("L_done")
    A("s_endpgm")

def reduce_kernel(name):
    L.append(f".globl {name}\n.p2align 8\n.type {name},@function")
    LBL(name)
    A("s_cmp_ge_u32 s2, 1152")
    A("s_cbranch_scc1 L_rdone")
    A("s_load_dwordx2 s[4:5], s[0:1], 56")
    A("s_load_dwordx2 s[6:7], s[0:1], 40")
    A("s_mul_hi_u32 s8, s2, 0x1c71c71d")
    A("s_mul_i32 s9, s8, 9")
    A("s_sub_u32 s9, s2, s9")
    A("s_and_b32 s10, s8, 3")
    A("s_lshr_b32 s11, s8, 2")
    A(f"s_mul_i32 s12, s11, {8*73728}")
    A("s_mul_i32 s13, s10, 18432")
    A("s_add_u32 s12, s12, s13")
    A("s_lshl_b32 s13, s9, 11")
    A("s_add_u32 s12, s12, s13")
    A("v_lshlrev_b32 v1, 4, v0")
    A("s_lshr_b32 s13, s9, 1")
    A("s_xor_b32 s13, s13, s10")
    A("s_lshl_b32 s13, s13, 5")
    A("s_lshl_b32 s14, s10, 7")
    A("s_add_u32 s13, s13, s14")
    A("s_and_b32 s14, s9, 1")
    A("s_lshl_b32 s14, s14, 4")
    A("s_add_u32 s13, s13, s14")
    A("s_lshl_b32 s14, s10, 4")
    A("s_add_u32 s14, s14, 512")
    A("s_cmp_eq_u32 s9, 8")
    A("s_cselect_b32 s13, s14, s13")
    A("s_lshl_b32 s13, s13, 1")
    A("s_mul_i32 s14, s11, 36864")
    A("s_add_u32 s13, s13, s14")
    A("v_and_b32 v2, 31, v0")
    A("v_mul_u32_u24 v2, 1152, v2")
    A("v_lshrrev_b32 v3, 5, v0")
    A("v_lshl_add_u32 v2, v3, 4, v2")
    A(f"s_mov_b32 s18, {256*73728}"); A("s_mov_b32 s19, 0x20000")
    A(f"s_mov_b32 s22, {1024*1152}"); A("s_mov_b32 s23, 0x20000")
    A("s_waitcnt lgkmcnt(0)")
    A("s_mov_b32 s16, s4"); A("s_mov_b32 s17, s5")
    A("s_mov_b32 s20, s6"); A("s_mov_b32 s21, s7")
    for hp in range(8):
        A(f"buffer_load_dwordx4 {vr(8+8*hp,4)}, v1, s[16:19], s12 offen {opt.red_flags}")
        A(f"buffer_load_dwordx4 {vr(12+8*hp,4)}, v1, s[16:19], s12 offen offset:1024 {opt.red_flags}")
        if hp<7: A("s_add_u32 s12, s12, 73728")
    for hp in range(1,8):
        A(f"s_waitcnt vmcnt({14-2*hp})")
        for i in range(0,8,2): A(f"v_pk_add_f32 {vr(8+i,2)}, {vr(8+i,2)}, {vr(8+8*hp+i,2)}")
    for i in range(4): A(f"v_cvt_pk_bf16_f32 v{4+i}, v{8+2*i}, v{9+2*i}")
    A("buffer_store_dwordx4 v[4:7], v2, s[20:23], s13 offen")
    if opt.dbgout:
        A("s_cmp_lg_u32 s2, 0"); A("s_cbranch_scc1 L_rdone")
        A("s_load_dwordx2 s[24:25], s[0:1], 48"); A("s_mov_b32 s26, 64"); A("s_mov_b32 s27, 0x20000")
        A("s_add_u32 s16, s4, 0x4000000"); A("s_addc_u32 s17, s5, 0"); A("s_mov_b32 s18, 64")
        A("v_lshlrev_b32 v1, 2, v0")
        A("buffer_load_dword v3, v1, s[16:19], 0 offen")
        A("s_waitcnt vmcnt(0) lgkmcnt(0)")
        A("buffer_store_dword v3, v1, s[24:27], 0 offen")
    LBL("L_rdone")
    A("s_endpgm")

def desc(name, vgpr, acc, sgpr):
    return f""".p2align 6
.amdhsa_kernel {name}
  .amdhsa_next_free_vgpr {vgpr}
  .amdhsa_next_free_sgpr {sgpr}
  .amdhsa_accum_offset {acc}
  .amdhsa_group_segment_fixed_size 0
  .amdhsa_kernarg_size 64
  .amdhsa_user_sgpr_count 2
  .amdhsa_user_sgpr_kernarg_segment_ptr 1
  .amdhsa_system_sgpr_workgroup_id_x 1
  .amdhsa_float_denorm_mode_32 3
  .amdhsa_float_denorm_mode_16_64 3
.end_amdhsa_kernel"""

HEADER = open('standalone__gqa_block_cached__sampling.s.ref').read().split('; Override launch')[0]
def build(path):
    L.clear(); uid[0]=0
    K1="standalone__gqa_block_cached__sampling_kernel"; K2="gqa_reduce_kernel"
    main_kernel(K1)
    reduce_kernel(K2)
    out = HEADER + f"; @launch kernel={K1} grid=(256,1,1) block=(256,1,1) lds=163840\n"
    out += f"; @launch kernel={K2} grid=(1152,1,1) block=(64,1,1) lds=0\n"
    out += '.amdgcn_target "amdgcn-amd-amdhsa--gfx950"\n.text\n' + "\n".join(L) + "\n"
    out += '.section .rodata,"a"\n' + desc(K1,512,256,96) + "\n" + desc(K2,72,72,32) + "\n"
    open(path,'w').write(out)

if __name__=='__main__':
    path = sys.argv[1]
    for a in sys.argv[2:]:
        k,v = a.split('=',1); setattr(opt,k,v)
    build(path)
```

```python
import sys, math, struct

class Opt:
    kv_flags = "nt"
    part_flags = ""
    red_flags = ""
    stamps = None
    fine = None
    thr = 8.0
    N = 6
    dbgout = None
    spin = 0
opt = Opt()

L = []
def A(s): L.append("    " + s)
def LBL(s): L.append(s + ":")
def f2u(x): return struct.unpack('<I', struct.pack('<f', x))[0]
SCALE = math.log2(math.e) / math.sqrt(128.0)

sK, sV, sWQ, sWO, sX, sWS = 4, 8, 12, 16, 20, 24
def srd(b): return f"s[{b}:{b+3}]"
sW=28; sT=29; sSlot=30; sRB=31; sRE=32; sKoff=33; sVoff=34; sT0=35; sT1=36; sC=37; sSS=38
sWqOff=39; sXoff=40; sWoOff=41; sMConsW=42; sMXrd=43; sMIssWq=44; sMIssVo=45; sMSide=46; sP=47
sFree=48; sBw=49; sBp=50; sSSp=51; sT2=52; sT3=53; sWxOff=54; sMSpec=55; sTail=56; sFirst=57; sThr=58
vL16=1; vKd=[2,3,4,5]; vVd=6; vWqd=7; vWod=8; vWxd=9; vXr=10; vKr=11; vVr=12; vWr=13; vWrX=14
vMs=[15,16]; vL8=17
vLs=[18,20]
vAl=[22,24]
vMf=[26,27]
vX0=28; vX1=29; vD0=30; vD1=31
vT=32
vX=[48,64]
vY=[80,96]
vP=[112,120]
vO=128
def Oreg(t,qt): return vO+32*t+16*qt
aQ=0; aKF=64; aVF=96; aPm=128; aPx=192; aXF=224
def vr(b,n): return f"v[{b}:{b+n-1}]"
def ar(b,n): return f"a[{b}:{b+n-1}]"
AUX=131072
MFMA="v_mfma_f32_32x32x16_bf16"
uid=[0]
def newlbl(p):
    uid[0]+=1; return f"L_{p}_{uid[0]}"

def stamp(idx, reg=0, plusT=False):
    if not opt.stamps: return
    A("s_memrealtime s[84:85]")
    if plusT: A(f"s_add_u32 m0, s{sT}, {idx}")
    else: A(f"s_mov_b32 m0, {idx}")
    A("s_waitcnt lgkmcnt(0)")
    A(f"v_writelane_b32 v{reg}, s84, m0")
def cyc(idx, reg=0):
    if not opt.stamps: return
    A("s_memtime s[84:85]"); A(f"s_mov_b32 m0, {idx}"); A("s_waitcnt lgkmcnt(0)"); A(f"v_writelane_b32 v{reg}, s84, m0")
def fine(idx):
    if not opt.fine: return
    l=newlbl("f")
    A(f"s_cmp_lg_u32 s{sT}, {opt.fine}")
    A(f"s_cbranch_scc1 {l}")
    cyc(idx, 25)
    LBL(l)
def stamp_out():
    if opt.dbgout:
        l=newlbl("dbg"); l2=newlbl("dbg")
        A("s_add_u32 s76, s70, 0x4000000"); A("s_addc_u32 s77, s71, 0"); A("s_mov_b32 s78, 256"); A("s_mov_b32 s79, 0x20000")
        A(f"s_cmp_lg_u32 s{sW}, 0"); A(f"s_cbranch_scc1 {l}")
        A("s_waitcnt lgkmcnt(0)")
        A("s_getreg_b32 s80, hwreg(HW_REG_XCC_ID)"); A("s_add_u32 s80, s80, 100")
        A("s_lshr_b32 s81, s2, 3"); A("s_lshl_b32 s81, s81, 1"); A("s_and_b32 s82, s2, 7"); A("s_add_u32 s81, s81, s82")
        A("s_cmp_gt_u32 s82, 1"); A(f"s_cbranch_scc1 {l2}"); A("s_cmp_gt_u32 s81, 5"); A(f"s_cbranch_scc1 {l2}")
        A("s_lshl_b32 s81, s81, 2"); A("s_add_u32 s81, s81, 40"); A(f"v_mov_b32 v{vT}, s80"); A(f"v_mov_b32 v{vT+1}, 0")
        A(f"buffer_store_dword v{vT}, v{vT+1}, s[76:79], s81 offen")
        LBL(l2)
        A("s_cmp_lg_u32 s2, 0"); A(f"s_cbranch_scc1 {l}")
        A("v_readlane_b32 s80, v0, 0"); A("v_readlane_b32 s81, v0, 2")
        for k,(reg,lane,cy) in enumerate(((0,62,0),(0,3,1),(23,40,0),(0,1,0),(0,8,0),(0,40,0),(0,41,0),(0,56,0),(0,57,0),(0,60,0))):
            A(f"v_readlane_b32 s82, v{reg}, {lane}"); A("s_nop 3"); A(f"s_sub_u32 s82, s82, s{81 if cy else 80}")
            A(f"v_mov_b32 v{vT}, s82"); A(f"v_mov_b32 v{vT+1}, 0"); A(f"buffer_store_dword v{vT}, v{vT+1}, s[76:79], 0 offen offset:{4*k}")
        LBL(l)
        return
    A("s_lshl_b32 s80, s2, 2"); A(f"s_add_u32 s80, s80, s{sW}"); A("s_mul_i32 s80, s80, 768")
    A("s_add_u32 s80, s80, 0x4000000")
    A("s_add_u32 s76, s70, s80"); A("s_addc_u32 s77, s71, 0"); A("s_mov_b32 s78, 768"); A("s_mov_b32 s79, 0x20000")
    A(f"v_lshrrev_b32 v{vT}, 2, v{vL16}")
    A(f"buffer_store_dword v0, v{vT}, s[76:79], 0 offen")
    A(f"buffer_store_dword v23, v{vT}, s[76:79], 0 offen offset:256")
    A(f"buffer_store_dword v25, v{vT}, s[76:79], 0 offen offset:512")

def emit(lst):
    for x in lst:
        if x.endswith(":"): L.append(x)
        else: A(x)
def I_kv(kind, slot, soff):
    s = sK if kind=='K' else sV
    r=[f"s_mov_b32 m0, s{slot}", f"s_add_u32 s{sT0}, s{soff}, 4096"]
    for n in range(4):
        v = vKd[n] if kind=='K' else vVd
        r.append(f"buffer_load_dwordx4 v{v}, {srd(s)}, s{soff} offen offset:{n*1024} {opt.kv_flags} lds")
    r += [f"s_add_u32 m0, s{slot}, 4096", f"s_add_u32 s{soff}, s{soff}, 32768"]
    for n in range(4):
        v = vKd[n] if kind=='K' else vVd
        r.append(f"buffer_load_dwordx4 v{v}, {srd(s)}, s{sT0} offen offset:{n*1024} {opt.kv_flags} lds")
    return r
def I_kvt(kind, slot, soff):
    r=[]
    for x in I_kv(kind, slot, soff):
        if x.startswith("buffer_") and int(opt.N)>0: r.append(f"s_waitcnt vmcnt({int(opt.N)-1}) ")
        r.append(x)
    return r
def merge_even(a, b):
    groups=[]; cur=[]
    for x in a:
        cur.append(x)
        if x.startswith("buffer_"): groups.append(cur); cur=[]
    if cur: groups[-1]+=cur
    tot=sum(cost(x) for x in b); out=[]; acc=0; g=0
    for i,x in enumerate(b):
        while g<len(groups) and acc>=tot*g/len(groups) and not (out and glued(out[-1])):
            out+=groups[g]; g+=1
        out.append(x); acc+=cost(x)
    while g<len(groups): out+=groups[g]; g+=1
    return out
def I_unit(s, vd, slot, soff, step, adv, n_instr=8):
    r=[]
    for n in range(n_instr):
        if n==0: r.append(f"s_mov_b32 m0, s{slot}")
        if n==4: r.append(f"s_add_u32 m0, s{slot}, 4096")
        r.append(f"s_add_u32 s{sT0}, s{soff}, {n*step-(n&3)*1024}")
        v = vd[n&3] if isinstance(vd,list) else vd
        r.append(f"buffer_load_dwordx4 v{v}, {srd(s)}, s{sT0} offen offset:{(n&3)*1024} lds")
    if adv: r.append(f"s_add_u32 s{soff}, s{soff}, {adv}")
    return r
def I_wq(slot): return I_unit(sWQ, vWqd, slot, sWqOff, 8*8192, 64*8192)
def I_wo(slot): return I_unit(sWO, vWod, slot, sWoOff, 4*1152, 32*1152)
def I_wx(slot): return I_unit(sWO, vWxd, slot, sWxOff, 8*1152, 256*1152)
def I_adv():
    return [f"s_add_u32 s{sSlot}, s{sSlot}, 8192", f"s_cmp_ge_u32 s{sSlot}, s{sRE}", f"s_cselect_b32 s{sSlot}, s{sRB}, s{sSlot}"]
def I_rdW(slot, vbase, dst):
    r=[f"v_add_u32 v{vT}, s{slot}, v{vbase}", f"v_xor_b32 v{vT+1}, 64, v{vT}"]
    for u in range(4):
        for tau in range(2):
            for w2 in range(2):
                r.append(f"ds_read_b64_tr_b16 {ar(dst+4*(u*2+tau)+2*w2,2)}, v{vT+tau} offset:{u*2048+w2*512}")
    return r
def I_mmW(src, xf, first=False):
    r=[]
    for u in range(4):
        for tau in range(2):
            c = "0" if (first and u==0) else ar(aPx+16*tau,16)
            r.append(f"{MFMA} {ar(aPx+16*tau,16)}, {ar(src+4*(u*2+tau),4)}, {xf(u)}, {c}")
    return r
def I_rdV(slot, dst):
    r=[f"v_add_u32 v{vT}, s{slot}, v{vVr}"]
    for t in range(1,4): r.append(f"v_xor_b32 v{vT+t}, {64*t}, v{vT}")
    for u in range(2):
        for t in range(4):
            for w2 in range(2):
                r.append(f"ds_read_b64_tr_b16 {ar(dst+8*t+4*u+2*w2,2)}, v{vT+t} offset:{u*4096+w2*1024}")
    return r
def I_rdK(slot, dst):
    r=[f"v_add_u32 v{vT+8}, s{slot}, v{vKr}", f"ds_read_b128 {ar(dst,4)}, v{vT+8}"]
    for s in range(1,8):
        r.append(f"v_xor_b32 v{vT+8+s}, {32*s}, v{vT+8}")
        r.append(f"ds_read_b128 {ar(dst+4*s,4)}, v{vT+8+s}")
    return r
def I_rdOF(preg):
    return [f"s_and_b32 s{sT0}, s{preg}, 3", f"s_xor_b32 s{sT0}, s{sT0}, 1", f"s_lshl_b32 s{sT0}, s{sT0}, 13",
            f"s_lshr_b32 s{sT1}, s{preg}, 2", f"s_lshl_b32 s{sT1}, s{sT1}, 11", f"s_add_u32 s{sT0}, s{sT0}, s{sT1}",
            f"s_add_u32 s{sT0}, s{sT0}, {AUX}", f"v_add_u32 v{vT+4}, s{sT0}, v{vL16}",
            f"ds_read_b128 {ar(aXF,4)}, v{vT+4}", f"ds_read_b128 {ar(aXF+4,4)}, v{vT+4} offset:1024"]
def I_mmO(src):
    return [f"{MFMA} {ar(aPm+16*t,16)}, {ar(src+8*t+4*u,4)}, {ar(aXF+4*u,4)}, {ar(aPm+16*t,16)}" for u in range(2) for t in range(4)]
def I_rdXFx():
    return [f"s_lshl_b32 s{sT0}, s{sW}, 1", f"s_and_b32 s{sT0}, s{sT0}, 3", f"s_lshl_b32 s{sT0}, s{sT0}, 13",
            f"s_lshr_b32 s{sT1}, s{sW}, 1", f"s_lshl_b32 s{sT1}, s{sT1}, 11", f"s_add_u32 s{sT0}, s{sT0}, s{sT1}",
            f"s_add_u32 s{sT0}, s{sT0}, {AUX}", f"v_add_u32 v{vT+4}, s{sT0}, v{vL16}",
            f"ds_read_b128 {ar(aXF,4)}, v{vT+4} offset:8192", f"ds_read_b128 {ar(aXF+4,4)}, v{vT+4} offset:{8192+1024}",
            f"ds_read_b128 {ar(aXF+8,4)}, v{vT+4}", f"ds_read_b128 {ar(aXF+12,4)}, v{vT+4} offset:1024"]
def I_qfrags(dst):
    return [f"v_accvgpr_read_b32 v{dst+i}, a{aPx+i}" for i in range(32)] + \
           [f"v_cvt_pk_bf16_f32 v{dst+i}, v{dst+2*i}, v{dst+2*i+1}" for i in range(16)]
def I_wait_side(n=16):
    l1=newlbl("w")
    return [f"s_bitcmp1_b32 s{sMSide}, s{sT}\n    s_cbranch_scc1 {l1}\n    s_waitcnt vmcnt({n})\n{l1}:\n    s_waitcnt vmcnt({n+8}) ; WS"]
def fix_ws(lst, base):
    k=0; out=[]
    for x in lst:
        if x.endswith("; WS"): x=I_wait_side(base+k)[0]
        if x.startswith("buffer_"): k+=1
        out.append(x)
    return out
def I_qk():
    r=[]
    for qt in range(2):
        for s in range(8):
            c = "0" if s==0 else vr(vX[qt],16)
            r.append(f"{MFMA} {vr(vX[qt],16)}, {ar(aKF+4*s,4)}, {ar(aQ+32*qt+4*s,4)}, {c}")
    return r
def I_fma(qt): return [f"v_fma_f32 v{vY[qt]+i}, v{vX[qt]+i}, s{sC}, -v{vMs[qt]}" for i in range(16)]
def I_pv():
    return [f"{MFMA} {vr(Oreg(t,qt),16)}, {ar(aVF+8*t+4*u,4)}, {vr(vP[qt]+4*u,4)}, {vr(Oreg(t,qt),16)}"
            for u in range(2) for t in range(4) for qt in range(2)]
def I_expsum():
    r=[]; pend=[]
    for qt in range(2):
        for j in range(8):
            y=vY[qt]+2*j
            r += [f"v_exp_f32 v{y}, v{y}", f"v_exp_f32 v{y+1}, v{y+1}"]
            r += pend
            pend=[f"v_pk_add_f32 {vr(vLs[qt],2)}, {vr(vLs[qt],2)}, {vr(y,2)}", f"v_cvt_pk_bf16_f32 v{vP[qt]+j}, v{y}, v{y+1}"]
    return r, pend
def cost(x):
    if x.endswith(":"): return 0
    if x.endswith("; WS"): return 12
    if x.startswith("v_exp"): return 8
    if x.startswith("buffer_"): return 12
    if x.startswith("ds_"): return 6
    if x.startswith("v_pk") or x.startswith("v_cvt"): return 5
    return 4
def weave(mf, fill):
    tot=sum(cost(x) for x in fill); out=[]; i=0; acc=0
    for k,m in enumerate(mf):
        out.append(m)
        tgt=tot*(k+1)/len(mf)
        while i<len(fill) and (acc+cost(fill[i])/2<=tgt or k==len(mf)-1 or fill[i].endswith(":") or (i>0 and glued(fill[i-1]))):
            out.append(fill[i]); acc+=cost(fill[i]); i+=1
    return out
def glued(x):
    return x.startswith("s_cmp")

def main_kernel(name):
    L.append(f".globl {name}\n.p2align 8\n.type {name},@function")
    LBL(name)
    A("s_cmp_ge_u32 s2, 256")
    A("s_cbranch_scc1 L_done")
    A("s_load_dwordx8 s[60:67], s[0:1], 0")
    A("s_load_dwordx2 s[68:69], s[0:1], 32")
    A("s_load_dwordx2 s[70:71], s[0:1], 56")
    A("v_lshrrev_b32 v32, 6, v0")
    A("v_and_b32 v31, 63, v0")
    A(f"v_readfirstlane_b32 s{sW}, v32")
    A("v_lshrrev_b32 v33, 4, v31")
    A("v_and_b32 v34, 15, v31")
    A("v_xor_b32 v35, v34, v33")
    A("v_lshlrev_b32 v35, 4, v35")
    A(f"v_lshl_add_u32 v{vKd[0]}, v33, 8, v35")
    A("v_mul_u32_u24 v36, 1152, v33")
    for n in range(4):
        A(f"v_xor_b32 v{44+n}, {64*n}, v35")
        A(f"v_add_u32 v{44+n}, v36, v{44+n}")
    A("v_lshrrev_b32 v38, 3, v31")
    A("v_and_b32 v37, 1, v33")
    A("v_lshlrev_b32 v37, 2, v37")
    A("v_and_b32 v39, 7, v31")
    A("v_xor_b32 v37, v37, v39")
    A("v_lshlrev_b32 v37, 4, v37")
    A(f"v_lshl_add_u32 v{vWqd}, v38, 13, v37")
    A("v_mul_u32_u24 v38, 1152, v38")
    A(f"v_add_u32 v{vWxd}, v38, v37")
    for n in range(1,4): A(f"v_xor_b32 v{vKd[n]}, {64*n}, v{vKd[0]}")
    A(f"s_lshl_b32 s{sRB}, s{sW}, 15")
    A(f"s_add_u32 s{sRE}, s{sRB}, 24576")
    A(f"s_mov_b32 s{sSS}, s{sRE}")
    A(f"s_lshl_b32 s{sBw}, s{sW}, 13")
    A(f"s_add_u32 s{sBw}, s{sBw}, {AUX}")
    A(f"s_lshl_b32 s{sKoff}, s{sW}, 13")
    A(f"s_mov_b32 s{sVoff}, s{sKoff}")
    A(f"s_and_b32 s{sT2}, s2, 7")
    A(f"s_lshr_b32 s{sT3}, s2, 3")
    A(f"s_lshl_b32 s{sWqOff}, s{sT2}, 10")
    A(f"s_lshl_b32 s{sT0}, s{sW}, 7")
    A(f"s_add_u32 s{sWqOff}, s{sWqOff}, s{sT0}")
    A(f"s_mul_i32 s{sXoff}, s{sT3}, 36864")
    A(f"s_add_u32 s{sTail}, s{sXoff}, 1024")
    A(f"s_lshl_b32 s{sT0}, s{sW}, 8")
    A(f"s_add_u32 s{sXoff}, s{sXoff}, s{sT0}")
    A(f"s_mul_i32 s{sWoOff}, s{sT2}, {512*1152}")
    A(f"s_mul_i32 s{sT1}, s{sW}, {64*1152}")
    A(f"s_add_u32 s{sWxOff}, s{sWoOff}, s{sT1}")
    A(f"s_add_u32 s{sWxOff}, s{sWxOff}, 1024")
    A(f"s_add_u32 s{sWoOff}, s{sWoOff}, s{sT0}")
    A("s_lshl_b32 s72, s2, 20")
    A("s_lshr_b32 s73, s2, 12")
    A("s_mul_i32 s74, s2, 73728")
    A(f"s_lshl_b32 s{sT1}, s{sT3}, 2")
    A(f"s_add_u32 s{sT1}, s{sT1}, s{sW}")
    A(f"s_mul_i32 s{sT1}, s{sT1}, 36")
    A(f"v_add_u32 v40, s{sT1}, v31")
    A(f"s_lshl_b32 s{sT1}, s{sT2}, 10")
    A("v_lshrrev_b32 v41, 3, v40")
    A("v_and_b32 v42, 7, v40")
    A("v_lshlrev_b32 v42, 7, v42")
    A("v_lshl_add_u32 v41, v41, 13, v42")
    A(f"v_add_u32 v41, s{sT1}, v41")
    A(f"s_mul_i32 s{sT1}, s{sT2}, 589824")
    A("v_lshlrev_b32 v40, 7, v40")
    A(f"v_add_u32 v40, s{sT1}, v40")
    A("v_cmp_gt_u32 vcc, 36, v31")
    A("v_mov_b32 v42, 0x7f000000")
    A("s_nop 0")
    R1=sT2; R2=sT3
    A(f"v_cndmask_b32 v{vX0}, v42, v41, vcc")
    A(f"v_cndmask_b32 v{vX1}, v42, v40, vcc")
    A(f"s_add_u32 s{R1}, s{sRB}, 8192")
    A(f"s_add_u32 s{R2}, s{sRB}, 16384")
    def mk(s, lo, hi, size=0, add=None):
        if add:
            A(f"s_add_u32 s{s}, s{lo}, s{add[0]}")
            A(f"s_addc_u32 s{s+1}, s{hi}, {add[1]}")
        else:
            A(f"s_mov_b32 s{s}, s{lo}"); A(f"s_mov_b32 s{s+1}, s{hi}")
    for s,size in ((sWQ,576*8192),(sX,32*36864),(sK,1<<20),(sV,1<<20),(sWO,4096*1152),(sWS,73728)):
        A(f"s_mov_b32 s{s+2}, {size}"); A(f"s_mov_b32 s{s+3}, 0x20000")
    A("s_waitcnt lgkmcnt(0)")
    mk(sX,60,61); mk(sK,62,63,0,(72,"s73")); mk(sWQ,66,67)
    stamp(0); cyc(2)
    A(f"buffer_load_dword v{vD0}, v{vX0}, {srd(sWQ)}, 0 offen")
    emit(I_unit(sX,[44,45,46,47],sBw,sXoff,4*1152,0))
    emit(I_unit(sX,vWxd,sSS,sTail,8*1152,0,4))
    emit(I_kv('K', sRB, sKoff))
    emit(I_wq(R1)); emit(I_wq(R2))
    mk(sV,64,65,0,(72,"s73")); mk(sWO,68,69); mk(sWS,70,71,0,(74,"0"))
    A(f"v_lshlrev_b32 v{vL16}, 4, v31")
    A(f"v_lshlrev_b32 v{vL8}, 3, v31")
    A("v_lshlrev_b32 v35, 2, v33")
    A("v_xor_b32 v35, v34, v35")
    A("v_lshlrev_b32 v35, 4, v35")
    A(f"v_lshl_add_u32 v{vVd}, v33, 8, v35")
    A(f"v_add_u32 v{vWod}, v36, v35")
    A("v_and_b32 v36, 31, v31")
    A("v_lshrrev_b32 v37, 5, v31")
    A("v_and_b32 v39, 15, v36")
    A("v_xor_b32 v39, v39, v37")
    A("v_lshlrev_b32 v39, 4, v39")
    A(f"v_lshl_add_u32 v{vXr}, v36, 8, v39")
    A(f"v_add_u32 v{vXr}, {AUX}, v{vXr}")
    A("v_and_b32 v39, 2, v36")
    A("v_lshl_or_b32 v39, v39, 1, v37")
    A("v_lshlrev_b32 v39, 4, v39")
    A("v_lshl_add_u32 v43, v36, 7, v39")
    A(f"v_add_u32 v43, s{sSS}, v43")
    A("v_and_b32 v38, 0x13, v36")
    A("v_and_b32 v39, 4, v36")
    A("v_lshl_or_b32 v38, v39, 1, v38")
    A("v_and_b32 v39, 8, v36")
    A("v_lshrrev_b32 v39, 1, v39")
    A("v_or_b32 v38, v38, v39")
    A("v_and_b32 v39, 15, v38")
    A("v_xor_b32 v39, v39, v37")
    A("v_lshlrev_b32 v39, 4, v39")
    A(f"v_lshl_add_u32 v{vKr}, v38, 8, v39")
    A("v_bfe_u32 v38, v31, 2, 2")
    A("v_lshl_add_u32 v39, v37, 3, v38")
    A("v_and_b32 v40, 1, v33")
    A("v_lshlrev_b32 v40, 5, v40")
    A("v_and_b32 v41, 1, v31")
    A("v_lshl_or_b32 v40, v41, 4, v40")
    A("v_and_b32 v41, 2, v31")
    A("v_lshl_or_b32 v40, v41, 2, v40")
    A(f"v_xor_b32 v41, s{sW}, v38")
    A("v_lshl_or_b32 v41, v41, 6, v40")
    A(f"v_lshl_add_u32 v{vVr}, v39, 8, v41")
    A("v_lshrrev_b32 v41, 1, v38")
    A("v_lshl_or_b32 v41, v41, 6, v40")
    A(f"v_lshl_add_u32 v{vWr}, v39, 7, v41")
    A(f"s_lshl_b32 s{sT0}, s{sW}, 5")
    A(f"v_xor_b32 v{vWrX}, s{sT0}, v{vWr}")
    A(f"s_xor_b32 s{sSSp}, s{sSS}, 32768")
    A(f"s_xor_b32 s{sBp}, s{sBw}, 8192")
    A(f"s_mov_b32 s{sC}, 0x{f2u(SCALE):08x}")
    A(f"s_mov_b32 s{sThr}, 0x{f2u(float(opt.thr)):08x}")
    A(f"s_mov_b32 s{sMConsW}, 0x000101ff")
    A(f"s_mov_b32 s{sMXrd}, 0x000001fe")
    A(f"s_mov_b32 s{sMIssWq}, 0x000000ff")
    A(f"s_mov_b32 s{sMIssVo}, 0x00ff0000")
    A(f"s_mov_b32 s{sMSide}, 0x01ff01ff")
    A(f"s_mov_b32 s{sMSpec}, 0x{(1<<9)|(1<<10)|(1<<14)|(1<<25)|(1<<30):08x}")
    A(f"s_mov_b32 s{sFree}, s{R2}")
    A(f"s_mov_b32 s{sP}, 0")
    A(f"s_mov_b32 s{sT}, 0")
    A(f"s_mov_b32 s{sSlot}, s{sRB}")
    A(f"v_mov_b32 v{vMs[0]}, 0"); A(f"v_mov_b32 v{vMs[1]}, 0")
    for u in range(1,4): A(f"v_xor_b32 v{43 - u}, {32*u}, v43")
    A("s_waitcnt vmcnt(24)")
    stamp(40,23)
    for u in range(4): A(f"ds_read_b128 {ar(aXF+4*u,4)}, v{43-u}")
    A("s_waitcnt lgkmcnt(0)")
    emit(I_wq(sSS))
    A("s_barrier")
    A("s_waitcnt vmcnt(24)")
    emit(I_rdK(sRB, aKF))
    A("s_waitcnt lgkmcnt(0)")
    emit(I_kv('K', sRB, sKoff))
    slots=[R1,R2,sSS]
    def piece(p, n, nxt):
        A(f"s_waitcnt vmcnt({n})")
        stamp(41+p,23)
        emit(I_rdW(slots[p%3], vWr, aPm))
        if p<8:
            for u in range(4):
                A(f"v_xor_b32 v{vT+2+u}, {128*(p&1)+32*u}, v{vXr}")
                A(f"ds_read_b128 {vr(vX[0]+4*u,4)}, v{vT+2+u} offset:{(p>>1)*8192}")
            xf=lambda u: vr(vX[0]+4*u,4)
        else: xf=lambda u: ar(aXF+4*u,4)
        A("s_waitcnt lgkmcnt(0)")
        emit(weave(I_mmW(aPm, xf, first=(p==0)), nxt) if nxt else I_mmW(aPm, xf))
    for p in range(3): piece(p, 24, I_wq(slots[p]))
    A("s_waitcnt vmcnt(24)")
    emit(I_rdK(sRB, aVF))
    A("s_waitcnt lgkmcnt(0)")
    emit(I_kv('V', sRB, sVoff))
    for p in range(3,6): piece(p, 24, I_wq(slots[p%3]))
    piece(6, 16, I_kv('K', R1, sKoff))
    piece(7, 16, [])
    piece(8, 8, [])
    A(f"buffer_load_dword v{vD0}, v{vX1}, {srd(sWO)}, 0 offen")
    A(f"s_sub_u32 s{sWqOff}, s{sWqOff}, {64*8192-512}")
    A(f"v_add_u32 v{vT}, s{sSS}, v{vL16}")
    A(f"v_add_u32 v{vT+1}, 24576, v{vL16}")
    A(f"v_add_u32 v{vT+2}, {24576+65536}, v{vL16}")
    A("s_nop 7")
    emit(I_qfrags(vY[0]))
    for f in range(4): A(f"ds_write_b128 v{vT}, {vr(vY[0]+4*f,4)} offset:{f*1024}")
    for i in range(32): A(f"v_accvgpr_write_b32 a{aPx+i}, 0")
    A("s_waitcnt lgkmcnt(0)")
    A("s_barrier")
    for f in range(16): A(f"ds_read_b128 {ar(aQ+4*f,4)}, v{vT+1+(f>>3)} offset:{((f>>2)&1)*32768+(f&3)*1024}")
    A("s_waitcnt lgkmcnt(0)")
    stamp(1)
    qk=I_qk()
    emit(qk[:12])
    emit(weave(qk[12:], ["s_nop 7"]+I_fma(0)))
    A("s_barrier")
    emit(I_wq(sSS))
    A(f"s_sub_u32 s{sWqOff}, s{sWqOff}, {576*8192}")
    for i in range(32): A(f"v_accvgpr_mov_b32 a{aKF+i}, a{aVF+i}")
    emit(I_fma(1))
    A(f"s_mov_b32 s{sFirst}, 1")
    A("s_branch L_rare")
    ex, ex_tail = I_expsum()
    qk=I_qk()
    L.append(".p2align 6")
    LBL("L_loop")
    A("s_waitcnt lgkmcnt(0)")
    fine(0)
    emit(weave(qk, merge_even(I_kvt('V', sFree, sVoff), ex)))
    emit(ex_tail)
    fine(1)
    emit(I_wait_side())
    stamp(0,23,True)
    fine(2)
    emit(I_rdV(sSlot, aVF))
    emit(I_fma(0))
    pv=I_pv()
    f1=I_fma(1)
    for k in range(4):
        if k%2==0: A(f"s_waitcnt lgkmcnt({14-k})")
        A(pv[k]); emit(f1[4*k:4*k+4])
    A("s_waitcnt lgkmcnt(0)")
    fine(3)
    mx=[]
    allY=[vY[0]+i for i in range(16)]+[vY[1]+i for i in range(16)]
    mx.append(f"v_max3_f32 v{vX0}, v{allY[0]}, v{allY[1]}, v{allY[2]}")
    mx.append(f"v_max3_f32 v{vX1}, v{allY[16]}, v{allY[17]}, v{allY[18]}")
    for i in range(6):
        mx.append(f"v_max3_f32 v{vX0}, v{vX0}, v{allY[3+2*i]}, v{allY[4+2*i]}")
        mx.append(f"v_max3_f32 v{vX1}, v{vX1}, v{allY[19+2*i]}, v{allY[20+2*i]}")
    mx.append(f"v_max3_f32 v{vX0}, v{vX0}, v{allY[15]}, v{allY[31]}")
    mx.append(f"v_max_f32 v{vX0}, v{vX0}, v{vX1}")
    mx.append(f"v_cmp_lt_f32 vcc, s{sThr}, v{vX0}")
    rest = [f"s_mov_b32 s{sT2}, s{sSlot}"] + I_adv() + mx[:14] + I_wait_side() + [f"s_mov_b32 s{sFree}, s{sSlot}"] + I_rdK(sSlot, aKF) + I_adv() + mx[14:]
    fill = fix_ws(rest[:1] + merge_even(I_kvt('K', sT2, sKoff), rest[1:]), 8)
    emit(weave(pv[4:], fill))
    fine(4)
    stamp(8,0,True)
    A(f"s_and_b32 s{sT1}, s{sT}, 15")
    A(f"s_cmp_eq_u32 s{sT1}, 15")
    A("s_cbranch_scc1 L_combine")
    A("s_cbranch_vccnz L_rare")
    LBL("L_rare_ret")
    A(f"s_bitcmp1_b32 s{sMSide}, s{sT}")
    A("s_cbranch_scc0 L_noside")
    A("s_waitcnt vmcnt(16)")
    fine(5)
    A(f"s_bitcmp1_b32 s{sMConsW}, s{sT}")
    A("s_cbranch_scc0 L_consV")
    emit(I_rdW(sSS, vWr, aVF))
    A(f"s_bitcmp1_b32 s{sMXrd}, s{sT}")
    A("s_cbranch_scc0 L_noxrd")
    A(f"s_and_b32 s{sT0}, s{sP}, 1"); A(f"s_lshl_b32 s{sT0}, s{sT0}, 7")
    A(f"s_lshr_b32 s{sT1}, s{sP}, 1"); A(f"s_lshl_b32 s{sT1}, s{sT1}, 13")
    A(f"v_xor_b32 v{vT+2}, s{sT0}, v{vXr}")
    A(f"v_add_u32 v{vT+2}, s{sT1}, v{vT+2}")
    A(f"s_add_u32 s{sP}, s{sP}, 1")
    A(f"ds_read_b128 {ar(aXF,4)}, v{vT+2}")
    for u in range(1,4):
        A(f"v_xor_b32 v{vT+2+u}, {32*u}, v{vT+2}")
        A(f"ds_read_b128 {ar(aXF+4*u,4)}, v{vT+2+u}")
    LBL("L_noxrd")
    A("s_waitcnt lgkmcnt(0)")
    emit(I_mmW(aVF, lambda u: ar(aXF+4*u,4)))
    A("s_branch L_issue")
    LBL("L_consV")
    emit(I_rdV(sSS, aVF))
    emit(I_rdOF(sP))
    A(f"s_add_u32 s{sP}, s{sP}, 1")
    A("s_waitcnt lgkmcnt(0)")
    emit(I_mmO(aVF))
    LBL("L_issue")
    fine(6)
    A(f"s_bitcmp1_b32 s{sMIssWq}, s{sT}")
    A("s_cbranch_scc0 L_issVo")
    emit(I_wq(sSS))
    A("s_branch L_noside")
    LBL("L_issVo")
    A(f"s_bitcmp1_b32 s{sMIssVo}, s{sT}")
    A("s_cbranch_scc0 L_noside")
    emit(I_wo(sSS))
    LBL("L_noside")
    fine(7)
    A(f"s_bitcmp1_b32 s{sMSpec}, s{sT}")
    A("s_cbranch_scc1 L_special")
    LBL("L_spec_ret")
    A(f"s_add_u32 s{sT}, s{sT}, 1")
    A("s_branch L_loop")
    LBL("L_special")
    A(f"s_and_b32 s{sT1}, s{sT}, 15")
    A(f"s_cmp_eq_u32 s{sT1}, 14")
    A("s_cbranch_scc1 L_sp14")
    A("s_waitcnt lgkmcnt(0)")
    A("s_barrier")
    A(f"s_cmp_lg_u32 s{sT}, 9")
    A("s_cbranch_scc1 L_spec_ret")
    emit(I_qfrags(vX[0]))
    A(f"v_add_u32 v{vT}, s{sBw}, v{vL16}")
    for f in range(4): A(f"ds_write_b128 v{vT}, {vr(vX[0]+4*f,4)} offset:{f*1024}")
    A("s_branch L_spec_ret")
    LBL("L_sp14")
    for qt in range(2):
        A(f"v_mov_b32 v{vMf[qt]}, v{vMs[qt]}"); A(f"v_mov_b32 v{vMs[qt]}, 0")
    A(f"s_cmp_lg_u32 s{sT}, 14")
    A("s_cbranch_scc1 L_spec_ret")
    A(f"v_add_u32 v{vT}, {AUX}, v{vL16}")
    for f in range(16): A(f"ds_read_b128 {ar(aQ+4*f,4)}, v{vT} offset:{(f>>2)*8192+(f&3)*1024}")
    A("s_waitcnt lgkmcnt(0)")
    A("s_barrier")
    A("s_branch L_spec_ret")
    LBL("L_rare")
    for qt,d in ((0,vX0),(1,vX1)): A(f"v_max3_f32 v{d}, v{vY[qt]}, v{vY[qt]+1}, v{vY[qt]+2}")
    for i in range(6):
        for qt,d in ((0,vX0),(1,vX1)): A(f"v_max3_f32 v{d}, v{d}, v{vY[qt]+3+2*i}, v{vY[qt]+4+2*i}")
    for qt,d in ((0,vX0),(1,vX1)): A(f"v_max_f32 v{d}, v{d}, v{vY[qt]+15}")
    A("s_nop 1")
    A(f"v_permlane32_swap_b32 v{vX0}, v{vX1}")
    A(f"v_max_f32 v{vX0}, v{vX0}, v{vX1}")
    A(f"s_cmp_lg_u32 s{sFirst}, 0")
    A("s_cbranch_scc1 L_r1")
    A(f"v_max_f32 v{vX0}, 0, v{vX0}")
    LBL("L_r1")
    A(f"v_mov_b32 v{vX1}, v{vX0}")
    A("s_nop 1")
    A(f"v_permlane32_swap_b32 v{vX0}, v{vX1}")
    for qt,d in ((0,vX0),(1,vX1)): A(f"v_add_f32 v{vMs[qt]}, v{vMs[qt]}, v{d}")
    for i in range(16):
        for qt,d in ((0,vX0),(1,vX1)): A(f"v_sub_f32 v{vY[qt]+i}, v{vY[qt]+i}, v{d}")
    A("s_cbranch_scc1 L_r2")
    for qt,d in ((0,vX0),(1,vX1)): A(f"v_exp_f32 v{vAl[qt]}, -v{d}")
    A("s_nop 0")
    for qt in range(2): A(f"v_pk_mul_f32 {vr(vLs[qt],2)}, {vr(vLs[qt],2)}, {vr(vAl[qt],2)} op_sel_hi:[1,0]")
    for t in range(4):
        for qt in range(2):
            for i in range(0,16,2):
                o=Oreg(t,qt)+i
                A(f"v_pk_mul_f32 {vr(o,2)}, {vr(o,2)}, {vr(vAl[qt],2)} op_sel_hi:[1,0]")
    A("s_branch L_rare_ret")
    LBL("L_r2")
    for i in range(0,128,2): A(f"v_pk_mov_b32 {vr(vO+i,2)}, 0, 0")
    for qt in range(2): A(f"v_pk_mov_b32 {vr(vLs[qt],2)}, 0, 0")
    A(f"s_mov_b32 s{sFirst}, 0")
    A("s_branch L_loop")
    LBL("L_combine")
    A(f"s_add_u32 s{sT}, s{sT}, 1")
    stamp(24,0,True)
    A(f"s_cmp_eq_u32 s{sT}, 32")
    A("s_cbranch_scc0 L_c1")
    A("s_waitcnt vmcnt(0)")
    emit(I_wx(sSlot)); emit(I_adv())
    emit(I_wo(sSlot)); emit(I_adv())
    LBL("L_c1")
    E=vT
    A(f"v_add_f32 v{vLs[0]}, v{vLs[0]}, v{vLs[0]+1}")
    A(f"v_add_f32 v{vLs[1]}, v{vLs[1]}, v{vLs[1]+1}")
    A(f"v_add_u32 v{E}, s{sSS}, v{vL16}")
    A(f"v_add_u32 v{E+1}, s{sBw}, v{vL16}")
    A(f"v_permlane32_swap_b32 v{vMf[0]}, v{vMf[1]}")
    A(f"v_permlane32_swap_b32 v{vLs[0]}, v{vLs[1]}")
    A(f"v_add_u32 v{E+2}, s{sFree}, v{vL8}")
    A(f"v_mov_b32 v{vD0}, v{vMf[0]}")
    A(f"v_add_f32 v{vD1}, v{vLs[0]}, v{vLs[1]}")
    A(f"v_add_u32 v{E+3}, s{sSSp}, v{vL16}")
    A(f"v_add_u32 v{E+4}, s{sBp}, v{vL16}")
    A(f"v_xor_b32 v{E+5}, 32768, v{E+2}")
    A("s_waitcnt lgkmcnt(0)")
    A(f"ds_write_b64 v{E+2}, {vr(vD0,2)}")
    for i in range(8): A(f"ds_write_b128 v{E+1}, {vr(Oreg(3,0)+4*i,4)} offset:{i*1024}")
    for i in range(8): A(f"ds_write_b128 v{E}, {vr(Oreg(1,0)+4*i,4)} offset:{i*1024}")
    A(f"v_add_u32 v{E+6}, s{sBp}, v{vL8}")
    A(f"v_xor_b32 v{E+7}, 65536, v{E+3}")
    A(f"v_xor_b32 v{E+8}, 16384, v{E+6}")
    A("s_waitcnt lgkmcnt(0)")
    A("s_barrier")
    cyc(4) if False else None
    A(f"ds_read_b64 {vr(vMf[0],2)}, v{E+5}")
    for i in range(8): A(f"ds_read_b128 {vr(Oreg(3,0)+4*i,4)}, v{E+4} offset:{i*1024}")
    for i in range(6): A(f"ds_read_b128 {vr(Oreg(1,0)+4*i,4)}, v{E+3} offset:{i*1024}")
    A("s_waitcnt lgkmcnt(14)")
    for i in range(6,8): A(f"ds_read_b128 {vr(Oreg(1,0)+4*i,4)}, v{E+3} offset:{i*1024}")
    def factors(final):
        A(f"v_max_f32 v{vX0}, v{vD0}, v{vMf[0]}")
        A(f"v_sub_f32 v{vD0}, v{vD0}, v{vX0}")
        A(f"v_sub_f32 v{vMf[0]}, v{vMf[0]}, v{vX0}")
        A(f"v_exp_f32 v{vAl[0]}, v{vD0}")
        A(f"v_exp_f32 v{vLs[0]}, v{vMf[0]}")
        A(f"v_mov_b32 v{vD0}, v{vX0}")
        A(f"v_mul_f32 v{vD1}, v{vD1}, v{vAl[0]}")
        A(f"v_fmac_f32 v{vD1}, v{vMf[1]}, v{vLs[0]}")
        if final:
            A(f"v_rcp_f32 v{vX1}, v{vD1}")
            A("s_nop 0")
            A(f"v_mul_f32 v{vAl[0]}, v{vAl[0]}, v{vX1}")
            A(f"v_mul_f32 v{vLs[0]}, v{vLs[0]}, v{vX1}")
        A(f"v_mov_b32 v{vAl[1]}, v{vAl[0]}")
        A(f"v_mov_b32 v{vLs[1]}, v{vLs[0]}")
        A("s_nop 1")
        A(f"v_permlane32_swap_b32 v{vAl[0]}, v{vAl[1]}")
        A(f"v_permlane32_swap_b32 v{vLs[0]}, v{vLs[1]}")
    def scale_own(t):
        for qt in range(2):
            for i in range(0,16,2):
                o=Oreg(t,qt)+i
                A(f"v_pk_mul_f32 {vr(o,2)}, {vr(o,2)}, {vr(vAl[qt],2)} op_sel_hi:[1,0]")
    def add_rcv(t, rt):
        for qt in range(2):
            for i in range(0,16,2):
                o=Oreg(t,qt)+i; r=Oreg(rt,qt)+i
                A(f"v_pk_fma_f32 {vr(o,2)}, {vr(r,2)}, {vr(vLs[qt],2)}, {vr(o,2)} op_sel_hi:[1,0,1]")
    factors(False)
    scale_own(2)
    A("s_waitcnt lgkmcnt(8)")
    add_rcv(2,3)
    A("s_waitcnt lgkmcnt(0)")
    for i in range(8): A(f"ds_write_b128 v{E+3}, {vr(Oreg(2,0)+4*i,4)} offset:{i*1024}")
    A(f"ds_write_b64 v{E+6}, {vr(vD0,2)} offset:4096")
    scale_own(0)
    add_rcv(0,1)
    A("s_waitcnt lgkmcnt(0)")
    A("s_barrier")
    A(f"ds_read_b64 {vr(vMf[0],2)}, v{E+8} offset:4096")
    for i in range(8): A(f"ds_read_b128 {vr(Oreg(1,0)+4*i,4)}, v{E+7} offset:{i*1024}")
    A("s_waitcnt lgkmcnt(8)")
    factors(True)
    scale_own(0)
    A("s_waitcnt lgkmcnt(0)")
    add_rcv(0,1)
    for i in range(16): A(f"v_cvt_pk_bf16_f32 v{Oreg(1,0)+i}, v{Oreg(0,0)+2*i}, v{Oreg(0,0)+2*i+1}")
    for f in range(4): A(f"ds_write_b128 v{E+4}, {vr(Oreg(1,0)+4*f,4)} offset:{f*1024}")
    A(f"s_mov_b32 s{sP}, 0")
    A("s_waitcnt lgkmcnt(0)")
    A("s_barrier")
    stamp(25,0,True)
    emit(I_rdXFx())
    A(f"s_cmp_eq_u32 s{sT}, 32")
    A("s_cbranch_scc1 L_tail")
    emit(I_wx(sSS))
    A(f"v_mov_b32 v{vWr}, v{vWrX}")
    for i in range(96): A(f"v_accvgpr_write_b32 a{aPm+i}, 0")
    A(f"s_mov_b32 s{sFirst}, 2")
    A("s_waitcnt lgkmcnt(0)")
    A("s_branch L_rare")
    LBL("L_tail")
    emit(I_wo(sFree))
    emit(I_wo(sSS))
    order=[]
    emit(I_adv())
    A(f"s_mov_b32 s{sT2}, s{sSlot}")
    emit(I_adv())
    A(f"s_mov_b32 s{sT3}, s{sSlot}")
    ring=[sT3, sFree, sSS, sT2]
    A("s_waitcnt vmcnt(24)")
    emit(I_rdW(sT2, vWr, aKF))
    A("s_waitcnt lgkmcnt(0)")
    emit(weave(I_mmW(aKF, lambda u: ar(aXF+4*u,4)), I_wo(sT2)))
    A(f"v_add_u32 v{vT+4}, {AUX}, v{vL16}")
    for p in range(8):
        A(f"s_waitcnt vmcnt({min(3,7-p)*8})")
        src = aVF if p%2==0 else aKF
        emit(I_rdV(ring[p%4], src))
        off=((p&3)^1)*8192+(p>>2)*2048
        xf = aXF+8*(p&1)
        A(f"ds_read_b128 {ar(xf,4)}, v{vT+4} offset:{off}")
        A(f"ds_read_b128 {ar(xf+4,4)}, v{vT+4} offset:{off+1024}")
        A("s_waitcnt lgkmcnt(0)")
        mm=[f"{MFMA} {ar(aPm+16*t,16)}, {ar(src+8*t+4*u,4)}, {ar(xf+4*u,4)}, {ar(aPm+16*t,16)}" for u in range(2) for t in range(4)]
        emit(weave(mm, I_wo(ring[p%4])) if p<4 else mm)
    stamp(60)
    A(f"v_add_u32 v{vT}, s{sRB}, v{vL16}")
    for i in range(2,8): A(f"ds_write_b128 v{vT}, {ar(aPx+4*i,4)} offset:{i*1024}")
    for i in range(8): A(f"v_accvgpr_read_b32 v{vX[0]+i}, a{aPx+i}")
    for b in range(1,4): A(f"v_xor_b32 v{vT+b}, {b*32768}, v{vT}")
    A(f"s_mul_i32 s{sT1}, s{sW}, 18432")
    A("s_waitcnt lgkmcnt(0)")
    A("s_barrier")
    for b in range(1,4):
        for j in range(2): A(f"ds_read_b128 {vr(vY[0]+8*b+4*j,4)}, v{vT+b} offset:{(2*b+j)*1024}")
    for i in range(16):
        if i%4==0: A(f"s_add_u32 s{sT0}, s{sT1}, {i*1024}")
        A(f"buffer_store_dwordx4 {ar(aPm+4*i,4)}, v{vL16}, {srd(sWS)}, s{sT0} offen offset:{(i&3)*1024} {opt.part_flags}")
    A(f"s_add_u32 s{sT0}, s{sT1}, {16*1024}")
    A("s_waitcnt lgkmcnt(0)")
    for b in range(1,4):
        for i in range(0,8,2): A(f"v_pk_add_f32 {vr(vX[0]+i,2)}, {vr(vX[0]+i,2)}, {vr(vY[0]+8*b+i,2)}")
    for j in range(2):
        A(f"buffer_store_dwordx4 {vr(vX[0]+4*j,4)}, v{vL16}, {srd(sWS)}, s{sT0} offen offset:{j*1024} {opt.part_flags}")
    if opt.stamps:
        stamp(61); A("s_waitcnt vmcnt(0)"); stamp(62); cyc(3); stamp_out()
    if int(opt.spin):
        A("s_memtime s[84:85]"); A("s_waitcnt lgkmcnt(0)"); A(f"s_add_u32 s86, s84, {int(opt.spin)}")
        LBL("L_spin")
        A("s_memtime s[84:85]"); A("s_waitcnt lgkmcnt(0)"); A("s_sub_u32 s87, s86, s84"); A("s_cmp_gt_i32 s87, 0"); A("s_cbranch_scc1 L_spin")
    LBL("L_done")
    A("s_endpgm")

def reduce_kernel(name):
    L.append(f".globl {name}\n.p2align 8\n.type {name},@function")
    LBL(name)
    A("s_cmp_ge_u32 s2, 1152")
    A("s_cbranch_scc1 L_rdone")
    A("s_load_dwordx2 s[4:5], s[0:1], 56")
    A("s_load_dwordx2 s[6:7], s[0:1], 40")
    A("s_mul_hi_u32 s8, s2, 0x1c71c71d")
    A("s_mul_i32 s9, s8, 9")
    A("s_sub_u32 s9, s2, s9")
    A("s_and_b32 s10, s8, 3")
    A("s_lshr_b32 s11, s8, 2")
    A(f"s_mul_i32 s12, s11, {8*73728}")
    A("s_mul_i32 s13, s10, 18432")
    A("s_add_u32 s12, s12, s13")
    A("s_lshl_b32 s13, s9, 11")
    A("s_add_u32 s12, s12, s13")
    A("v_lshlrev_b32 v1, 4, v0")
    A("s_lshr_b32 s13, s9, 1")
    A("s_xor_b32 s13, s13, s10")
    A("s_lshl_b32 s13, s13, 5")
    A("s_lshl_b32 s14, s10, 7")
    A("s_add_u32 s13, s13, s14")
    A("s_and_b32 s14, s9, 1")
    A("s_lshl_b32 s14, s14, 4")
    A("s_add_u32 s13, s13, s14")
    A("s_lshl_b32 s14, s10, 4")
    A("s_add_u32 s14, s14, 512")
    A("s_cmp_eq_u32 s9, 8")
    A("s_cselect_b32 s13, s14, s13")
    A("s_lshl_b32 s13, s13, 1")
    A("s_mul_i32 s14, s11, 36864")
    A("s_add_u32 s13, s13, s14")
    A("v_and_b32 v2, 31, v0")
    A("v_mul_u32_u24 v2, 1152, v2")
    A("v_lshrrev_b32 v3, 5, v0")
    A("v_lshl_add_u32 v2, v3, 4, v2")
    A(f"s_mov_b32 s18, {256*73728}"); A("s_mov_b32 s19, 0x20000")
    A(f"s_mov_b32 s22, {1024*1152}"); A("s_mov_b32 s23, 0x20000")
    A("s_waitcnt lgkmcnt(0)")
    A("s_mov_b32 s16, s4"); A("s_mov_b32 s17, s5")
    A("s_mov_b32 s20, s6"); A("s_mov_b32 s21, s7")
    for hp in range(8):
        A(f"buffer_load_dwordx4 {vr(8+8*hp,4)}, v1, s[16:19], s12 offen {opt.red_flags}")
        A(f"buffer_load_dwordx4 {vr(12+8*hp,4)}, v1, s[16:19], s12 offen offset:1024 {opt.red_flags}")
        if hp<7: A("s_add_u32 s12, s12, 73728")
    for hp in range(1,8):
        A(f"s_waitcnt vmcnt({14-2*hp})")
        for i in range(0,8,2): A(f"v_pk_add_f32 {vr(8+i,2)}, {vr(8+i,2)}, {vr(8+8*hp+i,2)}")
    for i in range(4): A(f"v_cvt_pk_bf16_f32 v{4+i}, v{8+2*i}, v{9+2*i}")
    A("buffer_store_dwordx4 v[4:7], v2, s[20:23], s13 offen")
    if opt.dbgout:
        A("s_cmp_lg_u32 s2, 0"); A("s_cbranch_scc1 L_rdone")
        A("s_load_dwordx2 s[24:25], s[0:1], 48"); A("s_mov_b32 s26, 64"); A("s_mov_b32 s27, 0x20000")
        A("s_add_u32 s16, s4, 0x4000000"); A("s_addc_u32 s17, s5, 0"); A("s_mov_b32 s18, 64")
        A("v_lshlrev_b32 v1, 2, v0")
        A("buffer_load_dword v3, v1, s[16:19], 0 offen")
        A("s_waitcnt vmcnt(0) lgkmcnt(0)")
        A("buffer_store_dword v3, v1, s[24:27], 0 offen")
    LBL("L_rdone")
    A("s_endpgm")

def desc(name, vgpr, acc, sgpr):
    return f""".p2align 6
.amdhsa_kernel {name}
  .amdhsa_next_free_vgpr {vgpr}
  .amdhsa_next_free_sgpr {sgpr}
  .amdhsa_accum_offset {acc}
  .amdhsa_group_segment_fixed_size 0
  .amdhsa_kernarg_size 64
  .amdhsa_user_sgpr_count 2
  .amdhsa_user_sgpr_kernarg_segment_ptr 1
  .amdhsa_system_sgpr_workgroup_id_x 1
  .amdhsa_float_denorm_mode_32 3
  .amdhsa_float_denorm_mode_16_64 3
.end_amdhsa_kernel"""

HEADER = open('standalone__gqa_block_cached__sampling.s.ref').read().split('; Override launch')[0]
def build(path):
    L.clear(); uid[0]=0
    K1="standalone__gqa_block_cached__sampling_kernel"; K2="gqa_reduce_kernel"
    main_kernel(K1)
    reduce_kernel(K2)
    out = HEADER + f"; @launch kernel={K1} grid=(256,1,1) block=(256,1,1) lds=163840\n"
    out += f"; @launch kernel={K2} grid=(1152,1,1) block=(64,1,1) lds=0\n"
    out += '.amdgcn_target "amdgcn-amd-amdhsa--gfx950"\n.text\n' + "\n".join(L) + "\n"
    out += '.section .rodata,"a"\n' + desc(K1,512,256,96) + "\n" + desc(K2,72,72,32) + "\n"
    open(path,'w').write(out)

if __name__=='__main__':
    path = sys.argv[1]
    for a in sys.argv[2:]:
        k,v = a.split('=',1); setattr(opt,k,v)
    build(path)
```
